```python
import torch

def _softmax(x, axis=-1):
    return torch.softmax(x, dim=axis)
def _gelu(x):
    return torch.nn.functional.gelu(x, approximate="tanh")
def _silu(x):
    return torch.nn.functional.silu(x)
def _sigmoid(x):
    return torch.sigmoid(x)
def _layernorm(x, axis=-1, eps=1e-5):
    m = x.mean(dim=axis, keepdim=True)
    v = x.var(dim=axis, keepdim=True, unbiased=False)
    return (x - m) / torch.sqrt(v + eps)
def _scatter_add(tgt, idx, src, axis=0):
    return tgt.clone().index_add_(axis, idx, src)
def _segment_sum(src, seg, n):
    out = torch.zeros((n,) + src.shape[1:], dtype=src.dtype)
    return out.index_add_(0, seg, src)
def _pad(x, pw):
    flat = tuple(v for pair in reversed(pw) for v in pair)
    return torch.nn.functional.pad(x, flat)

kernel_name = 'gated_mix__linear_attn_block__dense_activation_silu__prompt'

def setup_inputs():

    _w = (lambda a: (lambda t: t.to(torch.bfloat16) if t.is_floating_point() else t)(torch.as_tensor(a)))
    def _A_setup():
        B, S, D = 1, 2048, 512
        return {
            "x": _w((lambda *s: torch.randn(*s, dtype=torch.bfloat16) * 0.1)(B, S, D)),
            "wqkv": _w((lambda *s: torch.randn(*s, dtype=torch.bfloat16) * 0.8)(D, 3 * D)),
            "wo": _w((lambda *s: torch.randn(*s, dtype=torch.bfloat16) * 0.4)(D, D)),
        }
    _A_in = _A_setup()

    def _B_setup():
        B, S, D, F = 1, 2048, 512, 1792
        return {
            "x": _w((lambda *s: torch.randn(*s, dtype=torch.bfloat16) * 0.1)(B, S, D)),
            "w1": _w((lambda *s: torch.randn(*s, dtype=torch.bfloat16) * 3.2)(D, F) * (D ** -0.5)),
            "w2": _w((lambda *s: torch.randn(*s, dtype=torch.bfloat16) * 3.2)(F, D) * (F ** -0.5)),
        }
    _B_in = _B_setup()

    return {
        "A_x": _A_in["x"],
        "A_wqkv": _A_in["wqkv"],
        "A_wo": _A_in["wo"],
        "B_x": _B_in["x"],
        "B_w1": _B_in["w1"],
        "B_w2": _B_in["w2"],
        "gate_w": _w((lambda *s: torch.randn(*s, dtype=torch.bfloat16) * 0.1)(512) * 16.0),
    }

def reference(A_x, A_wqkv, A_wo, B_x, B_w1, B_w2, gate_w):
    def _A_ref(x, wqkv, wo):
        B, S, D = x.shape
        H = 32; Dh = D // H
        qkv = (lambda x, *d: x.permute(*d))((x @ wqkv).reshape(B, S, 3, H, Dh), 2, 0, 3, 1, 4)
        q, k, v = qkv[0], qkv[1], qkv[2]
        phi = lambda t: torch.where(t > 0, t + 1, torch.exp(t)) + 1e-6
        pq, pk = phi(q), phi(k)
        kv = torch.einsum("bhsd,bhse->bhde", pk, v)
        z = torch.einsum("bhsd->bhd", pk)
        num = torch.einsum("bhqd,bhde->bhqe", pq, kv)
        den = torch.einsum("bhqd,bhd->bhq", pq, z)[..., None] + 1e-6
        o = num / den
        return (lambda x, *d: x.permute(*d))(o, 0, 2, 1, 3).reshape(B, S, D) @ wo

    def _B_ref(x, w1, w2):
        h = torch.einsum("bsd,df->bsf", x, w1)
        h = _silu(h)
        out = torch.einsum("bsf,fd->bsd", h, w2)
        return out

    x = A_x
    g = _sigmoid((x * gate_w).sum(-1, keepdims=True))
    a = _A_ref(x, A_wqkv, A_wo)
    b = _B_ref(x, B_w1, B_w2)
    return g * a + (1 - g) * b
```

```python
class Asm:
    def __init__(self):
        self.lines = []
        self.uid = 0

    def __call__(self, text=""):
        for l in text.strip("\n").split("\n"):
            self.lines.append(l if l.rstrip().endswith(":") or l.startswith(".") or l.startswith(";") else "    " + l.strip())

    def label(self, stem):
        self.uid += 1
        return f"L_{stem}_{self.uid}"

    def text(self):
        return "\n".join(self.lines) + "\n"


def srd(a, d, base, nbytes):
    a(f"s_mov_b32 s{d}, s{base}")
    a(f"s_mov_b32 s{d+1}, s{base+1}")
    a(f"s_mov_b32 s{d+2}, {nbytes:#x}")
    a(f"s_mov_b32 s{d+3}, 0x20000")


def descriptor(name, vgpr, accum, sgpr=96):
    return f""".amdhsa_kernel {name}
  .amdhsa_next_free_vgpr {vgpr}
  .amdhsa_next_free_sgpr {sgpr}
  .amdhsa_accum_offset {accum}
  .amdhsa_group_segment_fixed_size 0
  .amdhsa_kernarg_size 80
  .amdhsa_user_sgpr_count 2
  .amdhsa_user_sgpr_kernarg_segment_ptr 1
  .amdhsa_system_sgpr_workgroup_id_x 1
.end_amdhsa_kernel
"""
```

```python
import re

TRANS = ("v_exp_f32", "v_rcp_f32", "v_log_f32", "v_rsq_f32", "v_sqrt_f32")


class I:
    __slots__ = ("kind", "text", "tag")

    def __init__(self, kind, text=None, tag=None):
        self.kind, self.text, self.tag = kind, text, tag


def op(t): return I("op", t)
def vm(t, tag=None): return I("vm", t, tag)
def ds(t, tag=None): return I("ds", t, tag)
def wvm(tag): return I("wvm", None, tag)
def wlg(tag): return I("wlg", None, tag)
def vm0(): return I("wvm", None, "*")
def lg0(): return I("wlg", None, "*")
def label(n): return I("label", n)
def reset(): return I("reset")


def ops(text):
    return [op(l.strip()) for l in text.strip().split("\n") if l.strip()]


def flat(x):
    out = []
    for e in x:
        if isinstance(e, (list, tuple)):
            out += flat(e)
        elif isinstance(e, str):
            out += ops(e)
        elif e is not None:
            out.append(e)
    return out


def spread(slots, groups, lo=0, hi=None):
    hi = len(slots) if hi is None else hi
    n = hi - lo
    for i, g in enumerate(groups):
        slots[lo + i * n // len(groups)].append(g)


class Counter:
    def __init__(self, name, cap):
        self.name, self.cap = name, cap
        self.q = []
        self.done = 0
        self.seen = set()

    def issue(self, tag):
        self.q.append(tag)
        if tag is not None:
            self.seen.add(tag)

    def wait(self, tag):
        if tag == "*":
            self.done = len(self.q)
            return 0
        tags = tag if isinstance(tag, (list, tuple, set)) else [tag]
        idx = -1
        for t in tags:
            assert t in self.seen, f"{self.name}: wait on tag never issued: {t}"
            for i in range(len(self.q) - 1, -1, -1):
                if self.q[i] == t:
                    idx = max(idx, i)
                    break
        if idx < self.done:
            return None
        n = len(self.q) - 1 - idx
        if n > self.cap:
            n = self.cap
        self.done = len(self.q) - n
        return n


def resolve(items):
    v, l = Counter("vm", 63), Counter("lg", 15)
    out = []
    for it in items:
        k = it.kind
        if k in ("op", "raw"):
            out.append(it.text)
        elif k == "label":
            out.append(it.text + ":")
        elif k == "vm":
            v.issue(it.tag); out.append(it.text)
        elif k == "ds":
            l.issue(it.tag); out.append(it.text)
        elif k == "reset":
            v.q, v.done, l.q, l.done = [], 0, [], 0
        elif k in ("wvm", "wlg"):
            c = v if k == "wvm" else l
            n = c.wait(it.tag)
            if n is None:
                continue
            name = "vmcnt" if k == "wvm" else "lgkmcnt"
            if out and out[-1].startswith("s_waitcnt") and name not in out[-1]:
                out[-1] += f" {name}({n})"
            else:
                out.append(f"s_waitcnt {name}({n})")
    return out


REG = re.compile(r"^-?\|?([vas])(\d+)\|?$|^-?([vas])\[(\d+):(\d+)\]$")


def regs(tok):
    tok = tok.strip()
    if tok == "vcc":
        return {("s", 106), ("s", 107)}
    if tok == "exec":
        return {("x", 0)}
    if tok == "m0":
        return {("m", 0)}
    m = REG.match(tok)
    if not m:
        return set()
    if m.group(1):
        return {(m.group(1), int(m.group(2)))}
    return {(m.group(3), i) for i in range(int(m.group(4)), int(m.group(5)) + 1)}


def decode(line):
    mn, _, rest = line.partition(" ")
    toks = [t.strip() for t in rest.split(",")] if rest else []
    if toks:
        toks[-1] = toks[-1].split(" ")[0]
    R = [regs(t) for t in toks]
    U = lambda xs: set().union(*xs) if xs else set()
    if mn.startswith("v_mfma"):
        return "mfma", R[0], U(R[1:]), {"c": R[3], "ab": R[1] | R[2]}
    if mn.startswith("buffer_") or mn.startswith("global_"):
        if "store" in mn:
            data = R[0] if mn.startswith("buffer_") else R[1]
            return "vmem", set(), U(R), {"wide": data if ("x4" in mn or "x3" in mn) else set()}
        if " lds" in line:
            return "vmem", set(), U(R) | {("m", 0)}, {}
        return "vmem", R[0], U(R[1:]), {}
    if mn.startswith("ds_"):
        if "write" in mn:
            return "ds", set(), U(R), {}
        return "ds", R[0], U(R[1:]), {}
    if mn.startswith("v_"):
        w, r = set(R[0]), U(R[1:])
        if mn.startswith("v_cmp") and mn.startswith("v_cmpx"):
            w |= {("x", 0)}
        if "_co_" in mn:
            w |= R[1]; r = U(R[2:])
        if mn.startswith("v_cndmask") and len(toks) == 3:
            r |= regs("vcc")
        if mn.startswith("v_permlane"):
            w |= R[1]; r |= R[0]
        if mn.startswith("v_fmac") or mn.startswith("v_dot2c"):
            r |= R[0]
        base = mn.replace("_e32", "").replace("_e64", "")
        return "valu", w, r, {"trans": base in TRANS, "lane": mn.startswith(("v_readfirstlane", "v_readlane")),
                              "perm": mn.startswith("v_permlane"), "dpp": "row_" in line or "quad_perm" in line}
    if mn == "s_nop":
        return "nop", set(), set(), {"n": int(toks[0]) + 1}
    if mn.startswith("s_"):
        if mn.startswith(("s_cmp", "s_waitcnt", "s_barrier", "s_branch", "s_cbranch", "s_endpgm", "s_setprio", "s_sleep")):
            return "salu", set(), U(R), {}
        w = set(R[0]) if R else set()
        if "saveexec" in mn:
            w |= {("x", 0)}
        return "salu", w, U(R[1:]), {}
    raise ValueError("cannot decode: " + line)


def need(p, c):
    pk, pw, pr, pe = p
    ck, cw, cr, ce = c
    n = 0
    vec = lambda s: {x for x in s if x[0] in "va"}
    sg = lambda s: {x for x in s if x[0] == "s"}
    if pk == "valu":
        if ck == "mfma" and vec(pw) & cr: n = max(n, 2)
        if ck == "mfma" and ("x", 0) in pw: n = max(n, 4)
        if ck == "valu":
            if pe["trans"] and not ce["trans"] and pw & cr: n = max(n, 1)
            if pe["trans"] and ce["trans"] and pw & cr: n = max(n, 1)
            if sg(pw) & cr: n = max(n, 2)
            if ce["lane"] and vec(pw) & cr: n = max(n, 1)
            if (ce["perm"] or ce["dpp"]) and vec(pw) & cr: n = max(n, 2)
            if ("x", 0) in pw and (ce["lane"] or ce["perm"]): n = max(n, 4)
        if ck == "vmem" and sg(pw) & cr: n = max(n, 5)
    if pk == "mfma":
        if ck == "mfma":
            if pw & ce["ab"]: n = max(n, 12)
            if pw & ce["c"] and pw != ce["c"]: n = max(n, 10)
            if pw & cw and pw != ce["c"]: n = max(n, 12)
        elif ck in ("valu", "vmem", "ds"):
            if pw & (cr | cw): n = max(n, 12)
            if ck == "valu" and pe["c"] & cw: n = max(n, 7)
    if pk == "salu" and ("m", 0) in pw and ck == "vmem" and ("m", 0) in cr: n = max(n, 1)
    if pk == "vmem" and pe.get("wide") and pe["wide"] & cw: n = max(n, 2)
    return n


def pad(lines):
    out, hist = [], []
    added = 0
    for ln in lines:
        if ln.endswith(":") or ln.startswith((".", ";")):
            out.append(ln)
            continue
        d = decode(ln)
        dist, req = 0, 0
        for h in reversed(hist):
            if h[0] != "nop":
                req = max(req, need(h, d) - dist)
            dist += h[3]["n"] if h[0] == "nop" else 1
            if dist >= 20:
                break
        while req > 0:
            k = min(req, 16)
            out.append(f"s_nop {k-1}")
            hist.append(("nop", set(), set(), {"n": k}))
            added += k
            req -= k
        out.append(ln)
        hist.append(d)
        hist = hist[-24:]
    return out, added


def text(lines):
    return "\n".join(l if l.endswith(":") or l.startswith((".", ";")) else "    " + l for l in lines) + "\n"
```

```python
import sys
from prog import op, vm, ds, wvm, wlg, vm0, lg0, label, reset, ops, flat, resolve, pad, text
from asmlib import descriptor

NAME = "gated_mix__linear_attn_block__dense_activation_silu__prompt"
K = NAME + "_kernel"
MF = "v_mfma_f32_32x32x16_bf16"

WS_H, WS_PQ, WS_KVP, WS_KVT = 0, 8 << 20, 10 << 20, 11 << 20
WS_G = WS_KVT + 65536
WS_F1 = 12 << 20
WS_F2 = WS_F1 + 16384
WS_F3 = WS_F1 + 32768
WS_STAMP = 128 << 20

SLOT, WREG, EBASE, EREG, RED = 45056, 11264, 135168, 7168, 90112

X, W, W2, WO, WS, OUT, GT, DBG = 8, 12, 16, 20, 24, 28, 32, 36
sW, sRB, sJ, sC, sXO, sWO, sLB, sEB = 40, 41, 42, 43, 44, 45, 46, 47
sN, sP, sPE, sPS, sH, sHE, sHS, sO = 48, 49, 50, 51, 52, 53, 54, 55
sT, sTN, sA, sB, sC0, sSP = 56, 57, 58, 59, 60, 61
sM1, sM2, sTM = 62, 64, 66
sNL, sE, sR, sHL, sHH, sG = 68, 69, 70, 71, 72, 73
STAMP0 = 76

WF = (112, 140)
XF = (168, 172)
vXD = 176
vWD = 180
vXA = (187, 191)
vWA = 195
vHA = 201
vL, vT0, vT1, vT2 = 204, 205, 206, 207
vEPS, vGF = 208, 224
vPD = 240
vPA = {"S0": 242, "S1": 242, "S2": 244, "E": 246}
vL16, vN, vST, vFL, vU0, vU1, vU2, vU3 = 248, 249, 250, 251, 252, 253, 254, 255
RING, KV = 64, 192
vHV, vFA, vFB, vG, vOG, vQ = 240, 244, 245, 246, 208 + 16, 252

LOG2E = 0x3FB8AA3B
NLOG2E = 0xBFB8AA3B
EPS = 0x358637BD
NEPSL = 0xB5C1A2E4
SPIN = 200000


def r(b, n=4, k="v"):
    return f"{k}[{b}:{b+n-1}]"


def srd(d, nbytes):
    return f"s_mov_b32 s{d+2}, {nbytes:#x}\ns_mov_b32 s{d+3}, 0x20000"


class Gen:
    def __init__(self, cfg):
        self.cfg = cfg
        self.nst = 0
        self.tail = []
        self.uid = 0

    def stamp(self, k):
        if not self.cfg.get("stamps"):
            return []
        self.nst = max(self.nst, k + 1)
        a = STAMP0 + 2 * k
        return [op("s_memrealtime s[4:5]"), op("s_memtime s[6:7]"), lg0(),
                op(f"s_mov_b32 s{a}, s4"), op(f"s_mov_b32 s{a+1}, s6")]

    def ring_base(self, reg, q):
        if reg == "E":
            return sEB, 2048 * q
        return sLB, {"S0": 0, "S1": SLOT, "S2": 2 * SLOT}[reg] + 2048 * q

    def ring_imm(self, reg, q):
        return 2048 * q + (SLOT if reg == "S1" else 0)

    def issue(self, kind, n, reg, q):
        sb, off = self.ring_base(reg, q)
        srd_, so = (W2, sP) if kind == "P" else (WO, sO)
        g = [op(f"s_add_u32 m0, s{sb}, {off}")]
        g.append(vm(f"buffer_load_dwordx4 v{vPD}, {r(srd_,4,'s')}, s{so} offen lds", f"{kind}{n}"))
        g.append(vm(f"buffer_load_dwordx4 v{vPD+1}, {r(srd_,4,'s')}, s{so} offen offset:1024 lds", f"{kind}{n}"))
        g.append(op(f"s_add_u32 s{so}, s{so}, 16384"))
        if kind == "P":
            g += ops(f"s_cmp_eq_u32 s{sP}, s{sPE}\ns_cselect_b32 s{sP}, s{sPS}, s{sP}")
        return g

    def drain(self, kind, n, reg, q, dst):
        out = []
        for t in range(2):
            for nb in range(2):
                out.append(ds(f"ds_read_b64_tr_b16 {r(dst+4*nb+2*t,2,'a')}, v{vPA[reg]+nb} "
                              f"offset:{self.ring_imm(reg,q)+1024*t}", f"d{kind}{n}"))
        return out

    def head(self):
        c = []
        c += ops(f"""
        s_cmp_ge_u32 s2, 256
        s_cbranch_scc1 L_end
        s_load_dwordx2 s[{X}:{X+1}], s[0:1], 0
        s_load_dwordx2 s[{W2}:{W2+1}], s[0:1], 40
        s_load_dwordx2 s[{WO}:{WO+1}], s[0:1], 16
        s_load_dwordx2 s[{WS}:{WS+1}], s[0:1], 72
        s_load_dwordx2 s[{OUT}:{OUT+1}], s[0:1], 56
        s_load_dwordx2 s[{GT}:{GT+1}], s[0:1], 48
        s_load_dwordx2 s[{DBG}:{DBG+1}], s[0:1], 64
        s_memrealtime s[4:5]
        """)
        if self.cfg.get("stamps"):
            c += ops("s_memtime s[6:7]")
        c += ops(f"""
        v_lshrrev_b32 v{vT0}, 6, v0
        v_and_b32 v{vL}, 63, v0
        s_and_b32 s{sE}, s2, 7
        v_readfirstlane_b32 s{sW}, v{vT0}
        s_lshr_b32 s{sR}, s2, 3
        s_and_b32 s{sA}, s{sE}, 1
        s_lshl_b32 s{sA}, s{sA}, 3
        s_and_b32 s{sRB}, s{sR}, 7
        s_add_u32 s{sRB}, s{sRB}, s{sA}
        s_lshr_b32 s{sB}, s{sR}, 3
        s_and_b32 s{sJ}, s{sE}, 6
        s_and_b32 s{sA}, s{sB}, 1
        s_add_u32 s{sJ}, s{sJ}, s{sA}
        s_mul_i32 s{sLB}, s{sW}, {WREG}
        s_add_u32 s{sC}, s{sRB}, s{sJ}
        {srd(X, 2 << 20)}
        {srd(WS, 256 << 20)}
        v_lshrrev_b32 v{vT0}, 3, v{vL}
        v_lshrrev_b32 v{vT1}, 4, v{vL}
        v_and_b32 v{vT2}, 7, v{vL}
        v_xor_b32 v{vU0}, v{vT1}, v{vT2}
        s_lshl_b32 s{sA}, s{sRB}, 17
        s_lshl_b32 s{sTM}, s{sW}, 15
        s_add_u32 s{sA}, s{sA}, s{sTM}
        v_lshlrev_b32 v{vU1}, 10, v{vT0}
        v_lshl_add_u32 v{vU0}, v{vU0}, 4, v{vU1}
        v_add_u32 v{vXD}, s{sA}, v{vU0}
        v_xor_b32 v{vU0}, 64, v{vXD}
        v_add_u32 v{vXD+1}, {8192-1024}, v{vU0}
        v_add_u32 v{vXD+2}, {2*(8192-1024)}, v{vXD}
        v_add_u32 v{vXD+3}, {3*(8192-1024)}, v{vU0}
        v_and_b32 v{vT1}, 1, v{vT1}
        v_lshlrev_b32 v{vT1}, 2, v{vT1}
        v_xor_b32 v{vT1}, v{vT1}, v{vT2}
        v_lshlrev_b32 v{vT1}, 4, v{vT1}
        s_cmp_ge_u32 s{sB}, 2
        s_cbranch_scc1 L_A
        """)
        return c

    def role_setup(self, role):
        RB = 3584 if role == "H" else 3072
        c = ops(f"s_load_dwordx2 s[{W}:{W+1}], s[0:1], {32 if role == 'H' else 8}")
        c += ops(srd(W, 512 * RB))
        if role == "H":
            c += ops(f"""
            s_add_u32 s{sC}, s{sC}, 4
            s_and_b32 s{sA}, s{sJ}, 1
            s_mul_i32 s{sB}, s{sJ}, 448
            s_lshl_b32 s{sTM}, s{sA}, 6
            s_add_u32 s{sHL}, s{sB}, s{sTM}
            s_xor_b32 s{sA}, s{sA}, 1
            s_mul_i32 s{sA}, s{sA}, 384
            s_add_u32 s{sHH}, s{sB}, s{sA}
            """)
        else:
            c += ops(f"s_lshl_b32 s{sHL}, s{sJ}, 7")
        c += ops(f"""
        s_and_b32 s{sC}, s{sC}, 7
        s_mov_b32 s{sC0}, s{sC}
        s_mul_i32 s{sA}, s{sW}, {16*RB}
        s_add_u32 s{sB}, s{sA}, s{sHL}
        v_mul_u32_u24 v{vU0}, {RB}, v{vT0}
        v_add3_u32 v{vWD}, v{vU0}, v{vT1}, s{sB}
        """)
        ls = 128 if role == "H" else 1024
        for L in range(3):
            for t in range(2):
                if L or t:
                    c.append(op(f"v_add_u32 v{vWD+2*L+t}, {L*ls + t*(8*RB-1024)}, v{vWD}"))
        if role == "H":
            c += ops(f"""
            v_lshrrev_b32 v{vU0}, 2, v{vL}
            v_mul_u32_u24 v{vU0}, {RB}, v{vU0}
            v_and_b32 v{vU1}, 3, v{vL}
            v_lshlrev_b32 v{vU1}, 4, v{vU1}
            s_add_u32 s{sB}, s{sA}, s{sHH}
            v_add3_u32 v{vWD+6}, v{vU0}, v{vU1}, s{sB}
            """)
        return c

    def chunk_dma(self, role, n):
        RB = 3584 if role == "H" else 3072
        base = (n % 3) * SLOT
        tag = f"c{n}"
        sal = []
        if n:
            sal += ops(f"s_add_u32 s{sC}, s{sC}, 1\ns_and_b32 s{sC}, s{sC}, 7")
        sal += ops(f"s_lshl_b32 s{sXO}, s{sC}, 7\ns_mul_i32 s{sWO}, s{sC}, {64*RB}")
        g = [sal]
        xs = [vm(f"buffer_load_dwordx4 v{vXD+p}, {r(X,4,'s')}, s{sXO} offen offset:{1024*p} lds", tag) for p in range(4)]
        wl = []
        for L in range(3):
            wl.append([op(f"s_add_u32 m0, s{sLB}, {base+4096+2048*L}"),
                       vm(f"buffer_load_dwordx4 v{vWD+2*L}, {r(W,4,'s')}, s{sWO} offen lds", tag)])
            wl.append([vm(f"buffer_load_dwordx4 v{vWD+2*L+1}, {r(W,4,'s')}, s{sWO} offen offset:1024 lds", tag)])
        if role == "H":
            wl.append([op(f"s_add_u32 m0, s{sLB}, {base+10240}"),
                       vm(f"buffer_load_dwordx4 v{vWD+6}, {r(W,4,'s')}, s{sWO} offen lds", tag)])
        g += wl
        g.append([op(f"s_add_u32 m0, s{sLB}, {base}"), xs[0]])
        g += [[x] for x in xs[1:]]
        return g

    def late_setup(self, role):
        c = ops(f"""
        {srd(W2, 1792*1024)}
        {srd(WO, 512*1024)}
        {srd(OUT, 2 << 20)}
        {srd(GT, 1024)}
        {srd(DBG, 256)}
        s_mov_b32 s{sNL}, {NLOG2E:#x}
        s_mul_i32 s{sEB}, s{sW}, {EREG}
        s_add_u32 s{sEB}, s{sEB}, {EBASE}
        s_and_b32 s{sT}, s{sR}, 3
        s_lshr_b32 s{sTN}, s{sR}, 2
        s_mul_i32 s{sA}, s{sTN}, 7
        s_lshr_b32 s{sA}, s{sA}, 1
        s_mul_i32 s{sB}, s{sT}, 7
        s_add_u32 s{sA}, s{sA}, s{sB}
        s_cmp_ge_u32 s{sA}, 28
        s_cselect_b32 s{sB}, 28, 0
        s_sub_u32 s{sA}, s{sA}, s{sB}
        s_lshl_b32 s{sB}, s{sE}, 2
        s_add_u32 s{sT}, s{sT}, s{sB}
        s_mul_i32 s{sB}, s{sW}, 28
        s_add_u32 s{sA}, s{sA}, s{sB}
        s_lshl_b32 s{sP}, s{sA}, 14
        s_lshl_b32 s{sH}, s{sA}, 10
        s_lshl_b32 s{sPS}, s{sB}, 14
        s_lshl_b32 s{sHS}, s{sB}, 10
        s_add_u32 s{sPE}, s{sPS}, {28 << 14}
        s_add_u32 s{sHE}, s{sHS}, {28 << 10}
        s_lshl_b32 s{sO}, s{sW}, 17
        v_lshlrev_b32 v{vL16}, 4, v{vL}
        s_lshl_b32 s{sA}, s{sTN}, 7
        v_lshl_add_u32 v{vU0}, v{vT0}, 10, v{vT1}
        v_add_u32 v{vPD}, s{sA}, v{vU0}
        v_add_u32 v{vPD+1}, {8192-1024}, v{vPD}
        """)
        c += ops(f"""
        v_and_b32 v{vU0}, 31, v{vL}
        v_lshrrev_b32 v{vU1}, 5, v{vL}
        v_bfe_u32 v{vU2}, v{vL}, 1, 3
        v_xor_b32 v{vU2}, v{vU1}, v{vU2}
        v_lshlrev_b32 v{vU2}, 4, v{vU2}
        v_lshl_add_u32 v{vU2}, v{vU0}, 7, v{vU2}
        """)
        for ks in range(4):
            c.append(op(f"v_xor_b32 v{vU3}, {32*ks}, v{vU2}"))
            c.append(op(f"v_add_u32 v{vXA[0]+ks}, s{sLB}, v{vU3}"))
            c.append(op(f"v_add_u32 v{vXA[1]+ks}, {2*SLOT}, v{vXA[0]+ks}"))
        c += ops(f"""
        v_bfe_u32 v{vU0}, v{vL}, 2, 2
        v_bfe_u32 v{vU2}, v{vL}, 4, 1
        v_lshlrev_b32 v{vU2}, 1, v{vU2}
        v_bfe_u32 v{vU3}, v{vL}, 1, 1
        v_or_b32 v{vU2}, v{vU2}, v{vU3}
        v_bfe_u32 v{vU3}, v{vL}, 3, 1
        v_lshl_or_b32 v{vU2}, v{vU3}, 2, v{vU2}
        v_and_b32 v{vU3}, 1, v{vL}
        v_lshlrev_b32 v{vU3}, 3, v{vU3}
        v_lshl_or_b32 v{vU2}, v{vU2}, 4, v{vU3}
        v_lshl_add_u32 v{vU2}, v{vU0}, 7, v{vU2}
        v_lshl_add_u32 v{vU3}, v{vU1}, 10, v{vU2}
        """)
        for s in range(3):
            c.append(op(f"v_add_u32 v{vWA+2*s}, {s*SLOT+4096}, v{vU3}"))
            c.append(op(f"v_xor_b32 v{vWA+2*s+1}, 64, v{vWA+2*s}"))
        c += ops(f"""
        v_lshl_add_u32 v{vU3}, v{vU1}, 9, v{vU2}
        v_add_u32 v{vPA['S0']}, s{sLB}, v{vU3}
        v_xor_b32 v{vPA['S0']+1}, 64, v{vPA['S0']}
        v_add_u32 v{vPA['S2']}, {2*SLOT}, v{vPA['S0']}
        v_xor_b32 v{vPA['S2']+1}, 64, v{vPA['S2']}
        v_add_u32 v{vPA['E']}, s{sEB}, v{vU3}
        v_xor_b32 v{vPA['E']+1}, 64, v{vPA['E']}
        s_lshl_b32 s{sA}, s{sRB}, 2
        s_add_u32 s{sA}, s{sA}, s{sW}
        s_lshl_b32 s{sB}, s{sA}, 8
        s_lshl_b32 s{sTM}, s{sJ}, 2
        s_add_u32 s{sB}, s{sB}, s{sTM}
        s_add_u32 s{sB}, s{sB}, {WS_F1 + (0 if role == 'H' else 32)}
        v_mov_b32 v{vFL}, s{sB}
        """)
        if role == "H":
            c += ops(f"""
            v_lshl_add_u32 v{vU3}, v{vU1}, 3, v{vU0}
            v_lshlrev_b32 v{vU3}, 6, v{vU3}
            v_bfe_u32 v{vU2}, v{vL}, 4, 1
            v_lshl_add_u32 v{vU3}, v{vU2}, 5, v{vU3}
            v_and_b32 v{vU2}, 3, v{vL}
            v_lshl_add_u32 v{vU3}, v{vU2}, 3, v{vU3}
            """)
            for s in range(3):
                c.append(op(f"v_add_u32 v{vHA+s}, {s*SLOT+10240}, v{vU3}"))
            c += ops(f"""
            s_mul_i32 s{sA}, s{sA}, {112*1024}
            v_add_u32 v{vST}, s{sA}, v{vL16}
            s_lshl_b32 s{sHL}, s{sHL}, 5
            s_lshl_b32 s{sHH}, s{sHH}, 5
            """)
        else:
            c += ops(f"""
            s_lshl_b32 s{sB}, s{sA}, 15
            s_lshl_b32 s{sTM}, s{sJ}, 12
            s_add_u32 s{sB}, s{sB}, s{sTM}
            s_add_u32 s{sB}, s{sB}, {WS_PQ}
            v_add_u32 v{vST}, s{sB}, v{vL16}
            s_lshl_b32 s{sG}, s{sA}, 10
            s_lshl_b32 s{sTM}, s{sJ}, 2
            s_add_u32 s{sG}, s{sG}, s{sTM}
            s_add_u32 s{sG}, s{sG}, {WS_G}
            """)
            c += [op(f"v_mov_b32 v{vEPS+i}, {EPS:#x}") for i in range(16)]
        return c

    def nonce_publish(self, role):
        lab = f"L_np{role}"
        return ops(f"""
        s_or_b32 s{sA}, s2, s{sW}
        s_cmp_lg_u32 s{sA}, 0
        s_cbranch_scc1 {lab}
        s_or_b32 s{sA}, s4, 1
        v_mov_b32 v{vU0}, s{sA}
        v_mov_b32 v{vU1}, 0
        buffer_store_dword v{vU0}, v{vU1}, {r(DBG,4,'s')}, 0 offen sc1
        """) + [label(lab)]

    def spin(self, load, check, dst_ok):
        self.uid += 1
        lab, lp = f"L_spin{self.uid}", f"L_spinl{self.uid}"
        t = [label(lab), op(f"s_mov_b32 s{sSP}, {SPIN}"), label(lp), op(load), op("s_waitcnt vmcnt(0)")]
        t += ops(check)
        t += ops(f"""
        s_cbranch_scc1 {dst_ok}
        s_sub_u32 s{sSP}, s{sSP}, 1
        s_cmp_lg_u32 s{sSP}, 0
        s_cbranch_scc1 {lp}
        s_branch {dst_ok}
        """)
        self.tail += t
        return lab

    def nonce_load(self):
        return [op(f"v_mov_b32 v{vU0}, 0"),
                vm(f"buffer_load_dword v{vN}, v{vU0}, {r(DBG,4,'s')}, 0 offen", "nonce")]

    def nonce_get(self, role):
        ok = f"L_nok{role}"
        chk = f"v_readfirstlane_b32 s{sN}, v{vN}\ns_cmp_lg_u32 s{sN}, 0"
        lab = self.spin(f"buffer_load_dword v{vN}, off, {r(DBG,4,'s')}, 0 sc1", chk, ok)
        return [wvm("nonce")] + ops(chk) + [op(f"s_cbranch_scc0 {lab}"), label(ok)]

    def reads(self, role, n):
        i, ks = divmod(n, 4)
        s, buf = i % 3, n & 1
        xa = vXA[1] if s == 2 else vXA[0]
        out = [ds(f"ds_read_b128 {r(XF[buf])}, v{xa+ks} offset:{SLOT if s == 1 else 0}", f"x{n}")]
        for b in self.order(role):
            for t in range(2):
                d = r(WF[buf] + 4 * b + 2 * t, 2)
                if b == 6:
                    a, o = vHA + s, ks * WREG + 256 * t
                else:
                    a, o = vWA + 2 * s + (b & 1), ks * WREG + 2048 * (b >> 1) + 512 * t
                out.append(ds(f"ds_read_b64_tr_b16 {d}, v{a} offset:{o}", f"w{n}.{b}"))
        return out

    def order(self, role):
        return list(range(7)) if role == "H" else [2, 3, 4, 5, 0, 1]

    def mfma(self, role, n, b):
        buf = n & 1
        w_, x_ = r(WF[buf] + 4 * b), r(XF[buf])
        d = r(16 * b, 16)
        c = d
        if n == 0:
            c = r(vEPS, 16) if (role == "A" and b < 4) else "0"
        if role == "A" and b >= 2:
            return op(f"{MF} {d}, {x_}, {w_}, {c}")
        return op(f"{MF} {d}, {w_}, {x_}, {c}")

    def kloop(self, role, ring_events):
        order = self.order(role)
        nb = len(order)
        post = [[[] for _ in range(nb)] for _ in range(32)]
        pre = [[[] for _ in range(nb)] for _ in range(32)]

        def place(n, groups, lo, hi):
            for x, g in enumerate(groups):
                post[n][lo + x * (hi - lo) // len(groups)].append(g)

        for n in range(32):
            i, ks = divmod(n, 4)
            pre[n][0].append(wlg([f"x{n}"] + [f"w{n}.{b}" for b in order[:2]]))
            pre[n][2].append(wlg([f"w{n}.{b}" for b in order[2:4]]))
            pre[n][4].append(wlg([f"w{n}.{b}" for b in order[4:]]))
            if ks == 3:
                bar = [lg0()]
                if i < 7:
                    bar.append(wvm(f"c{i+1}"))
                bar.append(op("s_barrier"))
                post[n][1].append(bar)
                if i < 7:
                    place(n, [[x] for x in self.reads(role, n + 1)], 1, nb)
            elif n < 31:
                place(n, [[x] for x in self.reads(role, n + 1)], 0, nb - 1 if ks == 2 else nb)
        for i in range(1, 6):
            g = self.chunk_dma(role, i + 2)
            third = (len(g) + 2) // 3
            for ks in range(3):
                place(4 * i + ks, g[ks * third:(ks + 1) * third], 0, nb)
        for n, groups in ring_events.items():
            place(n, groups, 2 if n % 4 == 3 else 0, nb)
        if role == "A":
            for ks in range(4):
                c = "0" if ks == 0 else r(96, 16)
                post[ks][nb - 1].insert(0, [op(f"{MF} {r(96,16)}, {r(vGF+4*ks)}, {r(XF[ks&1])}, {c}")])
            post[5][0].append([op(f"v_and_b32 v{vU0}, 31, v{vL}"), op(f"v_lshlrev_b32 v{vU0}, 5, v{vU0}"),
                               vm(f"buffer_store_dword v96, v{vU0}, {r(WS,4,'s')}, s{sG} offen sc1", "g")])
        c = []
        for n in range(32):
            for x, b in enumerate(order):
                c += flat(pre[n][x]) + [self.mfma(role, n, b)] + flat(post[n][x])
        return c

    def stage1_start(self, role):
        c = self.role_setup(role)
        c.append(op("s_waitcnt lgkmcnt(0)"))
        if self.cfg.get("stamps"):
            self.nst = max(self.nst, 1)
            c += ops(f"s_mov_b32 s{STAMP0}, s4\ns_mov_b32 s{STAMP0+1}, s6")
        c += flat(self.chunk_dma(role, 0))
        if role == "A":
            c += ops(f"""
            {srd(GT, 1024)}
            v_lshrrev_b32 v{vU0}, 5, v{vL}
            v_lshlrev_b32 v{vU0}, 4, v{vU0}
            """)
            for ks in range(4):
                c.append(vm(f"buffer_load_dwordx4 {r(vGF+4*ks)}, v{vU0}, {r(GT,4,'s')}, s{sXO} offen offset:{32*ks}", "c0"))
        c += flat(self.chunk_dma(role, 1)) + flat(self.chunk_dma(role, 2))
        c += self.late_setup(role)
        if role == "H":
            c += self.nonce_publish(role)
        c += [wvm("c0"), op("s_barrier")] + self.reads(role, 0)
        return c

    R1 = [("E", 0), ("E", 1), ("E", 2)] + [("S2", q) for q in range(5)]
    R0 = [("S0", q) for q in range(5)]
    RS1 = [("S1", q) for q in range(5)]

    def plan(self, role):
        p = {}
        seq = self.R1 + self.R0 + (self.RS1 + self.R1 if role == "H" else self.R1 + self.RS1)
        for n, s in enumerate(seq):
            p[("P", n)] = s
        p[("P", 26)], p[("P", 27)] = self.R0[0], self.R0[1]
        for n, s in enumerate(self.R0[2:] + self.RS1):
            p[("O", n)] = s
        return p

    def iss(self, kind, n):
        return self.issue(kind, n, *self.pl[(kind, n)])

    def drn(self, n, wait=True):
        return ([wvm(f"P{n}")] if wait else []) + self.drain("P", n, *self.pl[("P", n)], 8 * n)

    def reiss(self, old, kind, n):
        return [wlg(f"dP{old}")] + self.iss(kind, n)

    def ring_kloop(self):
        ev = {}
        ev[24] = [self.iss("P", n) for n in range(0, 3)]
        ev[25] = [self.iss("P", n) for n in range(3, 6)]
        ev[26] = [self.iss("P", n) for n in range(6, 8)] + [self.nonce_load()]
        ev[28] = [self.iss("P", n) for n in range(8, 11)]
        ev[29] = [self.iss("P", n) for n in range(11, 13)]
        ev[30] = [self.drn(0), self.drn(1)]
        return ev

    def silu8(self, a, t):
        c = [op(f"v_mul_f32 v{t+i}, s{sNL}, v{a+i}") for i in range(8)]
        c += [op(f"v_exp_f32 v{t+i}, v{t+i}") for i in range(8)]
        c += [op(f"v_add_f32 v{t+i}, 1.0, v{t+i}") for i in range(8)]
        c += [op(f"v_rcp_f32 v{t+i}, v{t+i}") for i in range(8)]
        c += [op(f"v_mul_f32 v{a+i}, v{a+i}, v{t+i}") for i in range(8)]
        c += [op(f"v_cvt_pk_bf16_f32 v{a+i}, v{a+2*i}, v{a+2*i+1}") for i in range(4)]
        return c

    def phi8(self, a, t):
        c = [op(f"v_fmamk_f32 v{t+i}, v{a+i}, {LOG2E:#x}, v{vU3}") for i in range(8)]
        c += [op(f"v_exp_f32_e64 v{t+i}, v{t+i} clamp") for i in range(8)]
        c += [op(f"v_max_f32 v{a+i}, v{vEPS}, v{a+i}") for i in range(8)]
        c += [op(f"v_add_f32 v{a+i}, v{a+i}, v{t+i}") for i in range(8)]
        c += [op(f"v_cvt_pk_bf16_f32 v{a+i}, v{a+2*i}, v{a+2*i+1}") for i in range(4)]
        return c

    @staticmethod
    def weave(body, groups):
        if not groups:
            return list(body)
        out, n = [], len(body)
        pos = {}
        for x, g in enumerate(groups):
            pos.setdefault(x * n // len(groups), []).append(g)
        for i, it in enumerate(body):
            out += flat(pos.get(i, []))
            out.append(it)
        return out

    def flag(self, v):
        return [op(f"v_mov_b32 v{vU0}, s{sN}"), vm0(),
                vm(f"buffer_store_dword v{vU0}, v{v}, {r(WS,4,'s')}, 0 offen sc1", "flag")]

    def last_drains(self, first):
        c = []
        for n in list(range(first, first + 8)) + [26, 27]:
            c += self.drn(n)
        return c + [lg0(), op("s_barrier")]

    def epi_H(self):
        fill = {
            0: [self.iss("P", n) for n in range(13, 18)],
            1: [self.drn(n) for n in range(2, 8)],
            2: [self.reiss(n, "P", 18 + n) for n in range(8)],
            3: [self.drn(n) for n in range(8, 13)],
            4: [self.reiss(8, "P", 26), self.reiss(9, "P", 27)] + [self.reiss(10 + n, "O", n) for n in range(3)],
            5: [self.drn(n) for n in range(13, 18)],
            6: [self.reiss(13 + n, "O", 3 + n) for n in range(5)],
        }
        c = []
        pend = []
        for u in range(14):
            b, hf = divmod(u, 2)
            a = 16 * b + 8 * hf
            c += self.weave(self.silu8(a, WF[0] + 8 * (u & 1)), fill.get(u, []))
            if b < 6:
                so, imm = sHL, 1024 * (u & 3)
            else:
                so, imm = sHH, 1024 * hf
            st = [vm(f"buffer_store_dwordx4 {r(a)}, v{vST}, {r(WS,4,'s')}, s{so} offen offset:{imm} sc1", "h")]
            if b < 6 and (u & 3) == 3:
                st.append(op(f"s_add_u32 s{sHL}, s{sHL}, 4096"))
            pend += st
            if u >= self.cfg.get("first_store", 6):
                c += pend
                pend = []
        c += self.nonce_get("H") + self.stamp(2) + self.flag(vFL) + self.stamp(3) + self.last_drains(18)
        return c

    def epi_A(self):
        T = WF[0]
        c = ops(f"v_mov_b32 v{vU3}, {NEPSL:#x}")
        c += [op(f"v_mov_b32 v{vGF+i}, 0x3f803f80") for i in range(4)]
        fill = {0: [self.drn(n) for n in range(2, 8)], 1: [self.reiss(n, "P", 13 + n) for n in range(8)],
                2: [self.drn(n) for n in range(8, 13)]}
        D1, D2 = (128, 144), (160, 96)
        for b in range(2):
            for hf in range(2):
                c += self.weave(self.phi8(32 + 16 * b + 8 * hf, T + 8 * hf), fill.get(2 * b + hf, []))
                a = 64 + 16 * b + 8 * hf
                c += [op(f"v_cvt_pk_bf16_f32 v{a+i}, v{a+2*i}, v{a+2*i+1}") for i in range(4)]
            for hf in range(2):
                pk, vv = r(32 + 16 * b + 8 * hf), r(64 + 16 * b + 8 * hf)
                c.append(op(f"{MF} {r(D1[b],16)}, {pk}, {vv}, {r(D1[b],16) if hf else 0}"))
                c.append(op(f"{MF} {r(D2[b],16)}, {pk}, {r(vGF)}, {r(D2[b],16) if hf else 0}"))
        c += ops(f"""
        v_and_b32 v{vU0}, 16, v{vL}
        v_cmp_eq_u32 vcc, 0, v{vU0}
        s_lshl_b32 s{sA}, s{sW}, 11
        s_add_u32 s{sA}, s{sA}, {SLOT}
        v_add_u32 v{vU0}, s{sA}, v{vL16}
        s_add_u32 s{sA}, s{sLB}, {SLOT}
        v_add_u32 v{vU1}, s{sA}, v{vL16}
        """)
        for b in range(2):
            for i in range(16):
                f, t = (D2[b] + i, D1[b] + i) if i < 8 else (D1[b] + i, D2[b] + i)
                c.append(op(f"v_cndmask_b32 v{D1[b]+i}, v{f}, v{t}, vcc"))
            for q in range(4):
                c.append(ds(f"ds_write_b128 v{vU0}, {r(D1[b]+4*q)} offset:{(2*b+(q>>1))*WREG + 1024*(q&1)}", "kw"))
        c += [lg0(), op("s_barrier")]
        for s in range(8):
            c.append(ds(f"ds_read_b128 {r(128+4*s)}, v{vU1} offset:{1024*s}", f"kr{s}"))
        c += ops(f"""
        s_lshl_b32 s{sA}, s{sJ}, 4
        s_add_u32 s{sA}, s{sA}, s{sRB}
        s_lshl_b32 s{sA}, s{sA}, 13
        s_lshl_b32 s{sB}, s{sW}, 11
        s_add_u32 s{sA}, s{sA}, s{sB}
        s_add_u32 s{sA}, s{sA}, {WS_KVP}
        s_lshl_b32 s{sB}, s{sJ}, 2
        s_add_u32 s{sB}, s{sB}, s{sW}
        s_lshl_b32 s{sB}, s{sB}, 8
        s_lshl_b32 s{sTM}, s{sRB}, 2
        s_add_u32 s{sB}, s{sB}, s{sTM}
        s_add_u32 s{sB}, s{sB}, {WS_F2}
        v_mov_b32 v{vU2}, s{sB}
        """)
        c.append(wlg("kr3"))
        c += [op(f"v_add_f32 v{128+i}, v{128+i}, v{136+i}") for i in range(8)]
        c.append(wlg("kr7"))
        c += [op(f"v_add_f32 v{144+i}, v{144+i}, v{152+i}") for i in range(8)]
        c += [op(f"v_add_f32 v{128+i}, v{128+i}, v{144+i}") for i in range(8)]
        for hf in range(2):
            c.append(vm(f"buffer_store_dwordx4 {r(128+4*hf)}, v{vL16}, {r(WS,4,'s')}, s{sA} offen offset:{1024*hf} sc1", "kvp"))
        c += self.nonce_get("A")
        q = self.phi8(0, T) + self.phi8(8, T + 8)
        c += q + self.stamp(2) + self.flag(vU2)
        fill2 = [self.iss("P", n) for n in range(21, 26)]
        fill2 += [self.reiss(8, "P", 26), self.reiss(9, "P", 27)] + [self.reiss(10 + n, "O", n) for n in range(3)]
        c += self.weave(self.phi8(16, T) + self.phi8(24, T + 8), fill2)
        c += flat([self.drn(n) for n in range(21, 26)])
        c += flat([self.reiss(21 + n, "O", 3 + n) for n in range(5)])
        for u in range(4):
            c.append(vm(f"buffer_store_dwordx4 {r(8*u)}, v{vST}, {r(WS,4,'s')}, 0 offen offset:{1024*u} sc1", "pq"))
        c += self.flag(vFL) + self.stamp(3) + self.last_drains(13)
        chk = f"v_cmp_ne_u32 vcc, s{sN}, v{vU1}\ns_nop 4\ns_cmp_eq_u64 vcc, 0"
        lab = self.spin(f"buffer_load_dword v{vU1}, v{vU0}, {r(WS,4,'s')}, 0 offen sc1", chk, "L_kvok")
        c += ops(f"""
        s_cmp_lg_u32 s{sW}, 0
        s_cbranch_scc1 L_s2
        s_lshr_b32 s{sTM}, s{sRB}, 2
        s_lshl_b32 s{sB}, s{sJ}, 2
        s_add_u32 s{sB}, s{sB}, s{sTM}
        s_lshl_b32 s{sA}, s{sB}, 8
        s_add_u32 s{sA}, s{sA}, {WS_F2}
        v_and_b32 v{vU0}, 15, v{vL}
        v_lshlrev_b32 v{vU0}, 2, v{vU0}
        v_add_u32 v{vU0}, s{sA}, v{vU0}
        v_lshrrev_b32 v{vU2}, 2, v{vL}
        v_lshlrev_b32 v{vU2}, 4, v{vU2}
        v_bfe_u32 v{vU3}, v{vL}, 1, 1
        v_lshl_add_u32 v{vU2}, v{vU3}, 10, v{vU2}
        v_and_b32 v{vU3}, 1, v{vL}
        v_lshl_add_u32 v{vU2}, v{vU3}, 3, v{vU2}
        s_lshl_b32 s{sA}, s{sJ}, 17
        s_lshl_b32 s{sTM}, s{sTM}, 11
        s_add_u32 s{sA}, s{sA}, s{sTM}
        s_and_b32 s{sTM}, s{sRB}, 3
        s_lshl_b32 s{sTM}, s{sTM}, 8
        s_add_u32 s{sA}, s{sA}, s{sTM}
        s_add_u32 s{sA}, s{sA}, {WS_KVP}
        s_lshl_b32 s{sB}, s{sB}, 10
        s_add_u32 s{sB}, s{sB}, s{sTM}
        s_add_u32 s{sB}, s{sB}, {WS_KVT}
        s_branch {lab}
        """)
        c += [label("L_kvok"), reset()]
        for p in range(16):
            c.append(vm(f"buffer_load_dwordx2 {r(2*p,2)}, v{vU2}, {r(WS,4,'s')}, s{sA} offen sc1", f"kp{p}"))
            c.append(op(f"s_add_u32 s{sA}, s{sA}, 8192"))
        c += ops(f"""
        v_lshlrev_b32 v{vU2}, 2, v{vL}
        v_and_b32 v{vU1}, 7, v{vL}
        s_lshl_b32 s{sA}, s{sJ}, 8
        s_lshl_b32 s{sTM}, s{sRB}, 2
        s_add_u32 s{sA}, s{sA}, s{sTM}
        s_add_u32 s{sA}, s{sA}, {WS_F3}
        v_lshlrev_b32 v{vU1}, 11, v{vU1}
        v_add_u32 v{vU1}, s{sA}, v{vU1}
        """)
        c.append(vm0())
        for st in (16, 8, 4, 2):
            c += [op(f"v_add_f32 v{i}, v{i}, v{i+st}") for i in range(st)]
        c.append(op("v_cvt_pk_bf16_f32 v0, v0, v1"))
        c.append(vm(f"buffer_store_dword v0, v{vU2}, {r(WS,4,'s')}, s{sB} offen sc1", "kvt"))
        c += self.flag(vU1)
        return c

    def stage2(self):
        cfg = self.cfg
        D = 16
        a_iss, a_chk = cfg.get("poll_at", 4), cfg.get("chk_at", 20)
        c = [label("L_s2"), reset()]
        c += ops(f"""
        v_lshrrev_b32 v{vU3}, 4, v{vL16}
        s_mul_i32 s{sA}, s{sT}, {2*112*1024}
        v_add_u32 v{vHV}, s{sA}, v{vL16}
        v_add_u32 v{vHV+1}, {112*1024}, v{vHV}
        v_and_b32 v{vU0}, 15, v{vU3}
        v_lshlrev_b32 v{vU0}, 2, v{vU0}
        v_bfe_u32 v{vU1}, v{vU3}, 4, 1
        v_lshl_add_u32 v{vU0}, v{vU1}, 8, v{vU0}
        s_lshl_b32 s{sA}, s{sT}, 9
        s_add_u32 s{sA}, s{sA}, {WS_F1}
        v_add_u32 v{vFA}, s{sA}, v{vU0}
        s_lshl_b32 s{sA}, s{sE}, 11
        s_lshl_b32 s{sB}, s{sW}, 9
        s_add_u32 s{sA}, s{sA}, s{sB}
        s_add_u32 s{sA}, s{sA}, {WS_F3}
        v_add_u32 v{vU0}, s{sA}, v{vU0}
        v_cmp_gt_u32 vcc, 32, v{vU3}
        s_lshl_b32 s{sA}, s{sW}, 1
        s_lshl_b32 s{sM1}, 0x30003, s{sA}
        s_mov_b32 s{sM1+1}, 0
        s_mov_b32 s{sM2}, 0xff00ff00
        s_mov_b32 s{sM2+1}, -1
        v_cndmask_b32 v{vFB}, v{vU0}, v{vFA}, vcc
        """)

        def chk(m):
            return (f"v_cmp_eq_u32 vcc, s{sN}, v{vN}\ns_nop 4\ns_and_b64 s[{sTM}:{sTM+1}], vcc, s[{m}:{m+1}]\n"
                    f"s_cmp_eq_u64 s[{sTM}:{sTM+1}], s[{m}:{m+1}]")
        lab = self.spin(f"buffer_load_dword v{vN}, v{vFA}, {r(WS,4,'s')}, 0 offen sc1", chk(sM1), "L_hok")
        c += [op(f"s_branch {lab}"), label("L_hok"), reset()]
        c += self.stamp(4)

        def hload(i):
            s = RING + 8 * (i % D)
            g = [vm(f"buffer_load_dwordx4 {r(s+4*x)}, v{vHV+x}, {r(WS,4,'s')}, s{sH} offen sc1", f"h{i}") for x in range(2)]
            g += ops(f"s_add_u32 s{sH}, s{sH}, 1024\ns_cmp_eq_u32 s{sH}, s{sHE}\ns_cselect_b32 s{sH}, s{sHS}, s{sH}")
            return g

        def wo_reg(n):
            return 224 + 8 * n if n < 4 else 8 * (n - 4)

        def pq_reg(n, i):
            return RING + 8 * ((12 + n) % D) + 4 * i

        for i in range(D):
            c += hload(i)
        GL = 224
        late = []
        late.append(ops(f"""
        s_lshl_b32 s{sA}, s{sW}, 13
        s_add_u32 s{sB}, s{sA}, {WS_KVT}
        s_lshl_b32 s{sTM}, s{sT}, 16
        s_add_u32 s{sA}, s{sA}, s{sTM}
        s_add_u32 s{sA}, s{sA}, {WS_PQ}
        v_and_b32 v{vU0}, 0x1f0, v{vL16}
        v_lshlrev_b32 v{vU0}, 1, v{vU0}
        s_lshl_b32 s{sG}, s{sT}, 11
        s_add_u32 s{sG}, s{sG}, {WS_G}
        v_add_u32 v{vU1}, 32768, v{vL16}
        """))
        late.append([vm(f"buffer_load_dwordx4 {r(GL+8*i+4*x)}, v{vU0}, {r(WS,4,'s')}, s{sG} offen offset:{1024*i+16*x} sc1", "gl")
                     for i in range(2) for x in range(2)])
        for n in range(8):
            g = []
            if n == 4:
                g += ops(f"s_add_u32 s{sA}, s{sA}, 4096\ns_add_u32 s{sB}, s{sB}, 4096")
            o = 1024 * (n & 3)
            g.append(vm(f"buffer_load_dwordx4 {r(KV+4*n)}, v{vL16}, {r(WS,4,'s')}, s{sB} offen offset:{o} sc1", f"q{n}"))
            g.append(vm(f"buffer_load_dwordx4 {r(pq_reg(n,0))}, v{vL16}, {r(WS,4,'s')}, s{sA} offen offset:{o} sc1", f"q{n}"))
            g.append(vm(f"buffer_load_dwordx4 {r(pq_reg(n,1))}, v{vU1}, {r(WS,4,'s')}, s{sA} offen offset:{o} sc1", f"q{n}"))
            late.append(g)
        lab2 = self.spin(f"buffer_load_dword v{vN}, v{vFB}, {r(WS,4,'s')}, 0 offen sc1", chk(sM2), "L_aok")
        for i in range(28):
            s = RING + 8 * (i % D)
            fill = [[] for _ in range(4)]
            if i + D < 28:
                fill[3] += hload(i + D)
            if i == a_iss:
                fill[3].append(vm(f"buffer_load_dword v{vN}, v{vFB}, {r(WS,4,'s')}, 0 offen sc1", "poll"))
            if i < 4 or 4 <= i - 1 < 8:
                n = i if i < 4 else i - 1
                dr = self.drain("O", n, *self.pl[("O", n)], wo_reg(n))
                for x in range(4):
                    fill[x].append(dr[x])
            if i == a_chk:
                fill[0] += [wvm("poll")] + ops(chk(sM2)) + [op(f"s_cbranch_scc0 {lab2}"), label("L_aok")]
                for x, g in enumerate(late):
                    fill[min(3, x // 3)] += g
            c.append(wvm(f"h{i}"))
            for x in range(4):
                ii, nb = x >> 1, x & 1
                acc = r(32 * ii + 16 * nb, 16)
                c.append(op(f"{MF} {acc}, {r(8*i+4*nb,4,'a')}, {r(s+4*ii)}, {acc if i else 0}"))
                c += fill[x]
        c += self.stamp(5)
        gate = [wvm("gl")]
        for ii in range(2):
            b = GL + 8 * ii
            gate += [op(f"v_add_f32 v{b+x}, v{b+x}, v{b+4+x}") for x in range(4)]
            gate += ops(f"""
            v_add_f32 v{b}, v{b}, v{b+2}
            v_add_f32 v{b+1}, v{b+1}, v{b+3}
            v_add_f32 v{b}, v{b}, v{b+1}
            v_mul_f32 v{b}, s{sNL}, v{b}
            v_exp_f32 v{b}, v{b}
            v_add_f32 v{b}, 1.0, v{b}
            v_rcp_f32 v{vG+ii}, v{b}
            """)
        gate += [op(f"v_sub_f32 v{GL+ii}, 1.0, v{vG+ii}") for ii in range(2)]
        OB = [[RING + 8 * 4 + 32 * p + 16 * ii for ii in range(2)] for p in range(2)]

        def o_mfma(n):
            return [[wvm(f"q{n}"), op(f"{MF} {r(OB[n&1][ii],16)}, {r(KV+4*n)}, {r(pq_reg(n,ii))}, 0")] for ii in range(2)]

        def proc(n):
            out = []
            for ii in range(2):
                base = OB[n & 1][ii]
                num, den = (base, base + 8) if n % 2 == 0 else (base + 8, base)
                t = vQ + ii
                out += ops(f"v_add_f32 v{t}, {EPS:#x}, v{den}\nv_rcp_f32 v{t}, v{t}\nv_mul_f32 v{t}, v{t}, v{vG+ii}")
                out += [op(f"v_mul_f32 v{num+x}, v{num+x}, v{t}") for x in range(8)]
                out += [op(f"v_cvt_pk_bf16_f32 v{num+x}, v{num+2*x}, v{num+2*x+1}") for x in range(4)]
            return out

        def w_mfma(n):
            out = []
            for ii in range(2):
                base = OB[n & 1][ii] + (0 if n % 2 == 0 else 8)
                for nb in range(2):
                    acc = r(32 * ii + 16 * nb, 16)
                    out.append([op(f"{MF} {acc}, {r(wo_reg(n)+4*nb,4,'a')}, {r(base)}, {acc}")])
            return out

        def mix(mfs, valu):
            out, k = [], len(mfs)
            for x, m in enumerate(mfs):
                out += m + valu[x * len(valu) // k:(x + 1) * len(valu) // k]
            return out

        scale = [op(f"v_mul_f32 v{32*ii+x}, v{32*ii+x}, v{GL+ii}") for ii in range(2) for x in range(32)]
        c += gate + [lg0()]
        c += mix(o_mfma(0) + o_mfma(1), scale) + proc(0)
        for n in range(8):
            m = w_mfma(n) + (o_mfma(n + 2) if n + 2 < 8 else [])
            c += mix(m, proc(n + 1) if n + 1 < 8 else [])
        c += self.stamp(6)
        c += ops(f"""
        v_lshrrev_b32 v{vU3}, 4, v{vL16}
        v_and_b32 v{vU0}, 31, v{vU3}
        v_lshrrev_b32 v{vU1}, 5, v{vU3}
        v_and_b32 v{vU2}, 7, v{vU3}
        v_xor_b32 v{vU1}, v{vU1}, v{vU2}
        v_lshlrev_b32 v{vU1}, 4, v{vU1}
        v_lshl_add_u32 v{vU0}, v{vU0}, 8, v{vU1}
        s_lshl_b32 s{sA}, s{sW}, 14
        s_add_u32 s{sA}, s{sA}, {RED}
        v_add_u32 v64, s{sA}, v{vU0}
        v_xor_b32 v65, 32, v64
        v_xor_b32 v66, 64, v64
        v_xor_b32 v67, 96, v64
        v_lshrrev_b32 v{vU1}, 3, v{vU3}
        v_lshlrev_b32 v{vU0}, 1, v{vU2}
        v_xor_b32 v{vU0}, v{vU0}, v{vU1}
        v_lshlrev_b32 v{vU0}, 4, v{vU0}
        v_lshl_add_u32 v{vU0}, v{vU1}, 8, v{vU0}
        s_lshl_b32 s{sA}, s{sW}, 11
        s_add_u32 s{sA}, s{sA}, {RED}
        v_add_u32 v68, s{sA}, v{vU0}
        v_xor_b32 v69, 16, v68
        v_lshlrev_b32 v{vU1}, 10, v{vU1}
        v_lshl_add_u32 v70, v{vU2}, 4, v{vU1}
        s_lshl_b32 s{sA}, s{sT}, 16
        s_lshl_b32 s{sB}, s{sW}, 13
        s_add_u32 s{sA}, s{sA}, s{sB}
        s_lshl_b32 s{sB}, s{sTN}, 7
        s_add_u32 s{sA}, s{sA}, s{sB}
        s_add_u32 s{sB}, s{sA}, 32768
        """)
        for ii in range(2):
            for nb in range(2):
                for j in range(4):
                    c.append(ds(f"ds_write_b128 v{64+j}, {r(32*ii+16*nb+4*j)} offset:{8192*ii+128*nb}", "rw"))
        c += [lg0(), op("s_barrier")]
        for ii in range(2):
            for p in range(4):
                for z in range(2):
                    c.append(ds(f"ds_read_b128 {r(32*ii+8*p+4*z)}, v{68+z} offset:{16384*p+8192*ii}", f"rr{ii}.{p}"))
        for ii in range(2):
            b = 32 * ii
            c.append(wlg(f"rr{ii}.1"))
            c += [op(f"v_add_f32 v{b+x}, v{b+x}, v{b+8+x}") for x in range(8)]
            c.append(wlg(f"rr{ii}.3"))
            c += [op(f"v_add_f32 v{b+16+x}, v{b+16+x}, v{b+24+x}") for x in range(8)]
            c += [op(f"v_add_f32 v{b+x}, v{b+x}, v{b+16+x}") for x in range(8)]
            c += [op(f"v_cvt_pk_bf16_f32 v{b+x}, v{b+2*x}, v{b+2*x+1}") for x in range(4)]
            c.append(vm(f"buffer_store_dwordx4 {r(b)}, v70, {r(OUT,4,'s')}, s{sA if ii == 0 else sB} offen", "o"))
        if cfg.get("stamps"):
            c += [vm0()] + self.stamp(7)
            c += ops(f"""
            s_cmp_lg_u32 s{sW}, {cfg.get('stamp_wave', 0)}
            s_cbranch_scc1 L_end
            s_lshl_b32 s{sA}, s2, 8
            s_add_u32 s{sA}, s{sA}, {WS_STAMP}
            v_mov_b32 v2, 0
            """)
            for k in range(self.nst):
                c += ops(f"v_mov_b32 v0, s{STAMP0+2*k}\nv_mov_b32 v1, s{STAMP0+2*k+1}\n"
                         f"buffer_store_dwordx2 v[0:1], v2, {r(WS,4,'s')}, s{sA} offen offset:{8*k}\ns_nop 1")
        c += [label("L_end"), op("s_endpgm")]
        return c

    def build(self):
        self.pl = self.plan("H")
        c = self.head()
        c += self.stage1_start("H") + self.kloop("H", self.ring_kloop()) + self.stamp(1) + self.epi_H()
        c += [op("s_branch L_s2"), label("L_A"), reset()]
        self.pl = self.plan("A")
        c += self.stage1_start("A") + self.kloop("A", self.ring_kloop()) + self.stamp(1) + self.epi_A()
        c += self.stage2()
        c += self.tail
        lines, added = pad(resolve(flat(c)))
        hdr = open(f"cdna_kernels/{NAME}.s.ref").read().split("; Override launch")[0]
        s = hdr + "; @launch grid=(256,1,1) block=(256,1,1) lds=163840\n"
        s += f'.amdgcn_target "amdgcn-amd-amdhsa--gfx950"\n.text\n.globl {K}\n.p2align 8\n.type {K},@function\n{K}:\n'
        s += text(lines)
        s += '.section .rodata,"a"\n.p2align 6\n' + descriptor(K, 512, 256, 102)
        return s, added, len(lines)


def main():
    out = sys.argv[1]
    cfg = {}
    for a in sys.argv[2:]:
        k, _, v = a.partition("=")
        cfg[k] = int(v) if v else 1
    s, added, n = Gen(cfg).build()
    open(out, "w").write(s)
    print(out, "lines", n, "nop states", added)


if __name__ == "__main__":
    main()
```

```python
import sys
from prog import op, vm, ds, wvm, wlg, vm0, lg0, label, reset, ops, flat, resolve, pad, text
from asmlib import descriptor

NAME = "gated_mix__linear_attn_block__dense_activation_silu__prompt"
K = NAME + "_kernel"
MF = "v_mfma_f32_32x32x16_bf16"

WS_H, WS_PQ, WS_KVP, WS_KVT = 0, 8 << 20, 10 << 20, 11 << 20
WS_G = WS_KVT + 65536
WS_F1 = 12 << 20
WS_F2 = WS_F1 + 16384
WS_F3 = WS_F1 + 32768
WS_STAMP = 128 << 20

SLOT, WREG, EBASE, EREG, RED = 45056, 11264, 135168, 7168, 90112

X, W, W2, WO, WS, OUT, GT, DBG = 8, 12, 16, 20, 24, 28, 32, 36
sW, sRB, sJ, sC, sXO, sWO, sLB, sEB = 40, 41, 42, 43, 44, 45, 46, 47
sN, sP, sPE, sPS, sH, sHE, sHS, sO = 48, 49, 50, 51, 52, 53, 54, 55
sT, sTN, sA, sB, sC0, sSP = 56, 57, 58, 59, 60, 61
sM1, sM2, sTM = 62, 64, 66
sNL, sE, sR, sHL, sHH, sG = 68, 69, 70, 71, 72, 73
STAMP0 = 76

WF = (112, 140)
XF = (168, 172)
vXD = 176
vWD = 180
vXA = (187, 191)
vWA = 195
vHA = 201
vL, vT0, vT1, vT2 = 204, 205, 206, 207
vEPS, vGF = 208, 224
vPD = 240
vPA = {"S0": 242, "S1": 242, "S2": 244, "E": 246}
vL16, vN, vST, vFL, vU0, vU1, vU2, vU3 = 248, 249, 250, 251, 252, 253, 254, 255
RING, KV = 64, 192
vHV, vFA, vFB, vG, vOG, vQ = 240, 244, 245, 246, 208 + 16, 252

LOG2E = 0x3FB8AA3B
NLOG2E = 0xBFB8AA3B
EPS = 0x358637BD
NEPSL = 0xB5C1A2E4
SPIN = 200000


def r(b, n=4, k="v"):
    return f"{k}[{b}:{b+n-1}]"


def srd(d, nbytes):
    return f"s_mov_b32 s{d+2}, {nbytes:#x}\ns_mov_b32 s{d+3}, 0x20000"


class Gen:
    def __init__(self, cfg):
        self.cfg = cfg
        self.nst = 0
        self.tail = []
        self.uid = 0

    def stamp(self, k, kind=1):
        if self.cfg.get("stamps") != kind:
            return []
        self.nst = max(self.nst, k + 1)
        a = STAMP0 + 2 * k
        return [op("s_memrealtime s[4:5]"), op("s_memtime s[6:7]"), lg0(),
                op(f"s_mov_b32 s{a}, s4"), op(f"s_mov_b32 s{a+1}, s6")]

    def ring_base(self, reg, q):
        if reg == "E":
            return sEB, 2048 * q
        return sLB, {"S0": 0, "S1": SLOT, "S2": 2 * SLOT}[reg] + 2048 * q

    def ring_imm(self, reg, q):
        return 2048 * q + (SLOT if reg == "S1" else 0)

    def issue(self, kind, n, reg, q):
        sb, off = self.ring_base(reg, q)
        srd_, so = (W2, sP) if kind == "P" else (WO, sO)
        g = [op(f"s_add_u32 m0, s{sb}, {off}")]
        g.append(vm(f"buffer_load_dwordx4 v{vPD}, {r(srd_,4,'s')}, s{so} offen lds", f"{kind}{n}"))
        g.append(vm(f"buffer_load_dwordx4 v{vPD+1}, {r(srd_,4,'s')}, s{so} offen offset:1024 lds", f"{kind}{n}"))
        g.append(op(f"s_add_u32 s{so}, s{so}, 16384"))
        if kind == "P":
            g += ops(f"s_cmp_eq_u32 s{sP}, s{sPE}\ns_cselect_b32 s{sP}, s{sPS}, s{sP}")
        return g

    def drain(self, kind, n, reg, q, dst):
        out = []
        for t in range(2):
            for nb in range(2):
                out.append(ds(f"ds_read_b64_tr_b16 {r(dst+4*nb+2*t,2,'a')}, v{vPA[reg]+nb} "
                              f"offset:{self.ring_imm(reg,q)+1024*t}", f"d{kind}{n}"))
        return out

    def head(self):
        c = []
        c += ops(f"""
        s_cmp_ge_u32 s2, 256
        s_cbranch_scc1 L_end
        s_load_dwordx2 s[{X}:{X+1}], s[0:1], 0
        s_load_dwordx2 s[{W2}:{W2+1}], s[0:1], 40
        s_load_dwordx2 s[{WO}:{WO+1}], s[0:1], 16
        s_load_dwordx2 s[{WS}:{WS+1}], s[0:1], 72
        s_load_dwordx2 s[{OUT}:{OUT+1}], s[0:1], 56
        s_load_dwordx2 s[{GT}:{GT+1}], s[0:1], 48
        s_load_dwordx2 s[{DBG}:{DBG+1}], s[0:1], 64
        s_memrealtime s[4:5]
        """)
        if self.cfg.get("stamps"):
            c += ops("s_memtime s[6:7]")
        c += ops(f"""
        v_lshrrev_b32 v{vT0}, 6, v0
        v_and_b32 v{vL}, 63, v0
        s_and_b32 s{sE}, s2, 7
        v_readfirstlane_b32 s{sW}, v{vT0}
        s_lshr_b32 s{sR}, s2, 3
        s_and_b32 s{sA}, s{sE}, 1
        s_lshl_b32 s{sA}, s{sA}, 3
        s_and_b32 s{sRB}, s{sR}, 7
        s_add_u32 s{sRB}, s{sRB}, s{sA}
        s_lshr_b32 s{sB}, s{sR}, 3
        s_and_b32 s{sJ}, s{sE}, 6
        s_and_b32 s{sA}, s{sB}, 1
        s_add_u32 s{sJ}, s{sJ}, s{sA}
        s_mul_i32 s{sLB}, s{sW}, {WREG}
        s_add_u32 s{sC}, s{sRB}, s{sJ}
        {srd(X, 2 << 20)}
        {srd(WS, 256 << 20)}
        v_lshrrev_b32 v{vT0}, 3, v{vL}
        v_lshrrev_b32 v{vT1}, 4, v{vL}
        v_and_b32 v{vT2}, 7, v{vL}
        v_xor_b32 v{vU0}, v{vT1}, v{vT2}
        s_lshl_b32 s{sA}, s{sRB}, 17
        s_lshl_b32 s{sTM}, s{sW}, 15
        s_add_u32 s{sA}, s{sA}, s{sTM}
        v_lshlrev_b32 v{vU1}, 10, v{vT0}
        v_lshl_add_u32 v{vU0}, v{vU0}, 4, v{vU1}
        v_add_u32 v{vXD}, s{sA}, v{vU0}
        v_xor_b32 v{vU0}, 64, v{vXD}
        v_add_u32 v{vXD+1}, {8192-1024}, v{vU0}
        v_add_u32 v{vXD+2}, {2*(8192-1024)}, v{vXD}
        v_add_u32 v{vXD+3}, {3*(8192-1024)}, v{vU0}
        v_and_b32 v{vT1}, 1, v{vT1}
        v_lshlrev_b32 v{vT1}, 2, v{vT1}
        v_xor_b32 v{vT1}, v{vT1}, v{vT2}
        v_lshlrev_b32 v{vT1}, 4, v{vT1}
        s_cmp_ge_u32 s{sB}, 2
        s_cbranch_scc1 L_A
        """)
        return c

    def role_setup(self, role):
        RB = 3584 if role == "H" else 3072
        c = ops(f"s_load_dwordx2 s[{W}:{W+1}], s[0:1], {32 if role == 'H' else 8}")
        c += ops(srd(W, 512 * RB))
        if role == "H":
            c += ops(f"""
            s_add_u32 s{sC}, s{sC}, 4
            s_and_b32 s{sA}, s{sJ}, 1
            s_mul_i32 s{sB}, s{sJ}, 448
            s_lshl_b32 s{sTM}, s{sA}, 6
            s_add_u32 s{sHL}, s{sB}, s{sTM}
            s_xor_b32 s{sA}, s{sA}, 1
            s_mul_i32 s{sA}, s{sA}, 384
            s_add_u32 s{sHH}, s{sB}, s{sA}
            """)
        else:
            c += ops(f"s_lshl_b32 s{sHL}, s{sJ}, 7")
        c += ops(f"""
        s_and_b32 s{sC}, s{sC}, 7
        s_mov_b32 s{sC0}, s{sC}
        s_mul_i32 s{sA}, s{sW}, {16*RB}
        s_add_u32 s{sB}, s{sA}, s{sHL}
        v_mul_u32_u24 v{vU0}, {RB}, v{vT0}
        v_add3_u32 v{vWD}, v{vU0}, v{vT1}, s{sB}
        """)
        ls = 128 if role == "H" else 1024
        for L in range(3):
            for t in range(2):
                if L or t:
                    c.append(op(f"v_add_u32 v{vWD+2*L+t}, {L*ls + t*(8*RB-1024)}, v{vWD}"))
        if role == "H":
            c += ops(f"""
            v_lshrrev_b32 v{vU0}, 2, v{vL}
            v_mul_u32_u24 v{vU0}, {RB}, v{vU0}
            v_and_b32 v{vU1}, 3, v{vL}
            v_lshlrev_b32 v{vU1}, 4, v{vU1}
            s_add_u32 s{sB}, s{sA}, s{sHH}
            v_add3_u32 v{vWD+6}, v{vU0}, v{vU1}, s{sB}
            """)
        return c

    def chunk_dma(self, role, n):
        RB = 3584 if role == "H" else 3072
        base = (n % 3) * SLOT
        tag = f"c{n}"
        sal = []
        if n:
            sal += ops(f"s_add_u32 s{sC}, s{sC}, 1\ns_and_b32 s{sC}, s{sC}, 7")
        sal += ops(f"s_lshl_b32 s{sXO}, s{sC}, 7\ns_mul_i32 s{sWO}, s{sC}, {64*RB}")
        g = [sal]
        xs = [vm(f"buffer_load_dwordx4 v{vXD+p}, {r(X,4,'s')}, s{sXO} offen offset:{1024*p} lds", tag) for p in range(4)]
        wl = []
        for L in range(3):
            wl.append([op(f"s_add_u32 m0, s{sLB}, {base+4096+2048*L}"),
                       vm(f"buffer_load_dwordx4 v{vWD+2*L}, {r(W,4,'s')}, s{sWO} offen lds", tag)])
            wl.append([vm(f"buffer_load_dwordx4 v{vWD+2*L+1}, {r(W,4,'s')}, s{sWO} offen offset:1024 lds", tag)])
        if role == "H":
            wl.append([op(f"s_add_u32 m0, s{sLB}, {base+10240}"),
                       vm(f"buffer_load_dwordx4 v{vWD+6}, {r(W,4,'s')}, s{sWO} offen lds", tag)])
        g += wl
        g.append([op(f"s_add_u32 m0, s{sLB}, {base}"), xs[0]])
        g += [[x] for x in xs[1:]]
        return g

    def late_setup(self, role):
        c = ops(f"""
        {srd(W2, 1792*1024)}
        {srd(WO, 512*1024)}
        {srd(OUT, 2 << 20)}
        {srd(GT, 1024)}
        {srd(DBG, 256)}
        s_mov_b32 s{sNL}, {NLOG2E:#x}
        s_mul_i32 s{sEB}, s{sW}, {EREG}
        s_add_u32 s{sEB}, s{sEB}, {EBASE}
        s_and_b32 s{sT}, s{sR}, 3
        s_lshr_b32 s{sTN}, s{sR}, 2
        s_mul_i32 s{sA}, s{sTN}, 7
        s_lshr_b32 s{sA}, s{sA}, 1
        s_mul_i32 s{sB}, s{sT}, 7
        s_add_u32 s{sA}, s{sA}, s{sB}
        s_cmp_ge_u32 s{sA}, 28
        s_cselect_b32 s{sB}, 28, 0
        s_sub_u32 s{sA}, s{sA}, s{sB}
        s_lshl_b32 s{sB}, s{sE}, 2
        s_add_u32 s{sT}, s{sT}, s{sB}
        s_mul_i32 s{sB}, s{sW}, 28
        s_add_u32 s{sA}, s{sA}, s{sB}
        s_lshl_b32 s{sP}, s{sA}, 14
        s_lshl_b32 s{sH}, s{sA}, 10
        s_lshl_b32 s{sPS}, s{sB}, 14
        s_lshl_b32 s{sHS}, s{sB}, 10
        s_add_u32 s{sPE}, s{sPS}, {28 << 14}
        s_add_u32 s{sHE}, s{sHS}, {28 << 10}
        s_lshl_b32 s{sO}, s{sW}, 17
        v_lshlrev_b32 v{vL16}, 4, v{vL}
        s_lshl_b32 s{sA}, s{sTN}, 7
        v_lshl_add_u32 v{vU0}, v{vT0}, 10, v{vT1}
        v_add_u32 v{vPD}, s{sA}, v{vU0}
        v_add_u32 v{vPD+1}, {8192-1024}, v{vPD}
        """)
        c += ops(f"""
        v_and_b32 v{vU0}, 31, v{vL}
        v_lshrrev_b32 v{vU1}, 5, v{vL}
        v_bfe_u32 v{vU2}, v{vL}, 1, 3
        v_xor_b32 v{vU2}, v{vU1}, v{vU2}
        v_lshlrev_b32 v{vU2}, 4, v{vU2}
        v_lshl_add_u32 v{vU2}, v{vU0}, 7, v{vU2}
        """)
        for ks in range(4):
            c.append(op(f"v_xor_b32 v{vU3}, {32*ks}, v{vU2}"))
            c.append(op(f"v_add_u32 v{vXA[0]+ks}, s{sLB}, v{vU3}"))
            c.append(op(f"v_add_u32 v{vXA[1]+ks}, {2*SLOT}, v{vXA[0]+ks}"))
        c += ops(f"""
        v_bfe_u32 v{vU0}, v{vL}, 2, 2
        v_bfe_u32 v{vU2}, v{vL}, 4, 1
        v_lshlrev_b32 v{vU2}, 1, v{vU2}
        v_bfe_u32 v{vU3}, v{vL}, 1, 1
        v_or_b32 v{vU2}, v{vU2}, v{vU3}
        v_bfe_u32 v{vU3}, v{vL}, 3, 1
        v_lshl_or_b32 v{vU2}, v{vU3}, 2, v{vU2}
        v_and_b32 v{vU3}, 1, v{vL}
        v_lshlrev_b32 v{vU3}, 3, v{vU3}
        v_lshl_or_b32 v{vU2}, v{vU2}, 4, v{vU3}
        v_lshl_add_u32 v{vU2}, v{vU0}, 7, v{vU2}
        v_lshl_add_u32 v{vU3}, v{vU1}, 10, v{vU2}
        """)
        for s in range(3):
            c.append(op(f"v_add_u32 v{vWA+2*s}, {s*SLOT+4096}, v{vU3}"))
            c.append(op(f"v_xor_b32 v{vWA+2*s+1}, 64, v{vWA+2*s}"))
        c += ops(f"""
        v_lshl_add_u32 v{vU3}, v{vU1}, 9, v{vU2}
        v_add_u32 v{vPA['S0']}, s{sLB}, v{vU3}
        v_xor_b32 v{vPA['S0']+1}, 64, v{vPA['S0']}
        v_add_u32 v{vPA['S2']}, {2*SLOT}, v{vPA['S0']}
        v_xor_b32 v{vPA['S2']+1}, 64, v{vPA['S2']}
        v_add_u32 v{vPA['E']}, s{sEB}, v{vU3}
        v_xor_b32 v{vPA['E']+1}, 64, v{vPA['E']}
        s_lshl_b32 s{sA}, s{sRB}, 2
        s_add_u32 s{sA}, s{sA}, s{sW}
        s_lshl_b32 s{sB}, s{sA}, 8
        s_lshl_b32 s{sTM}, s{sJ}, 2
        s_add_u32 s{sB}, s{sB}, s{sTM}
        s_add_u32 s{sB}, s{sB}, {WS_F1 + (0 if role == 'H' else 32)}
        v_mov_b32 v{vFL}, s{sB}
        """)
        if role == "H":
            c += ops(f"""
            v_lshl_add_u32 v{vU3}, v{vU1}, 3, v{vU0}
            v_lshlrev_b32 v{vU3}, 6, v{vU3}
            v_bfe_u32 v{vU2}, v{vL}, 4, 1
            v_lshl_add_u32 v{vU3}, v{vU2}, 5, v{vU3}
            v_and_b32 v{vU2}, 3, v{vL}
            v_lshl_add_u32 v{vU3}, v{vU2}, 3, v{vU3}
            """)
            for s in range(3):
                c.append(op(f"v_add_u32 v{vHA+s}, {s*SLOT+10240}, v{vU3}"))
            c += ops(f"""
            s_mul_i32 s{sA}, s{sA}, {112*1024}
            v_add_u32 v{vST}, s{sA}, v{vL16}
            s_lshl_b32 s{sHL}, s{sHL}, 5
            s_lshl_b32 s{sHH}, s{sHH}, 5
            """)
        else:
            c += ops(f"""
            s_lshl_b32 s{sB}, s{sA}, 15
            s_lshl_b32 s{sTM}, s{sJ}, 12
            s_add_u32 s{sB}, s{sB}, s{sTM}
            s_add_u32 s{sB}, s{sB}, {WS_PQ}
            v_add_u32 v{vST}, s{sB}, v{vL16}
            s_lshl_b32 s{sG}, s{sA}, 10
            s_lshl_b32 s{sTM}, s{sJ}, 2
            s_add_u32 s{sG}, s{sG}, s{sTM}
            s_add_u32 s{sG}, s{sG}, {WS_G}
            """)
            c += [op(f"v_mov_b32 v{vEPS+i}, {EPS:#x}") for i in range(16)]
        return c

    def nonce_publish(self, role):
        lab = f"L_np{role}"
        return ops(f"""
        s_or_b32 s{sA}, s2, s{sW}
        s_cmp_lg_u32 s{sA}, 0
        s_cbranch_scc1 {lab}
        s_or_b32 s{sA}, s4, 1
        v_mov_b32 v{vU0}, s{sA}
        v_mov_b32 v{vU1}, 0
        buffer_store_dword v{vU0}, v{vU1}, {r(DBG,4,'s')}, 0 offen sc1
        """) + [label(lab)]

    def spin(self, load, check, dst_ok):
        self.uid += 1
        lab, lp = f"L_spin{self.uid}", f"L_spinl{self.uid}"
        t = [label(lab), op(f"s_mov_b32 s{sSP}, {SPIN}"), label(lp), op(load), op("s_waitcnt vmcnt(0)")]
        t += ops(check)
        t += ops(f"""
        s_cbranch_scc1 {dst_ok}
        s_sub_u32 s{sSP}, s{sSP}, 1
        s_cmp_lg_u32 s{sSP}, 0
        s_cbranch_scc1 {lp}
        s_branch {dst_ok}
        """)
        self.tail += t
        return lab

    def nonce_load(self):
        return [op(f"v_mov_b32 v{vU0}, 0"),
                vm(f"buffer_load_dword v{vN}, v{vU0}, {r(DBG,4,'s')}, 0 offen", "nonce")]

    def nonce_get(self, role):
        ok = f"L_nok{role}"
        chk = f"v_readfirstlane_b32 s{sN}, v{vN}\ns_cmp_lg_u32 s{sN}, 0"
        lab = self.spin(f"buffer_load_dword v{vN}, off, {r(DBG,4,'s')}, 0 sc1", chk, ok)
        return [wvm("nonce")] + ops(chk) + [op(f"s_cbranch_scc0 {lab}"), label(ok)]

    def reads(self, role, n):
        i, ks = divmod(n, 4)
        s, buf = i % 3, n & 1
        xa = vXA[1] if s == 2 else vXA[0]
        out = [ds(f"ds_read_b128 {r(XF[buf])}, v{xa+ks} offset:{SLOT if s == 1 else 0}", f"x{n}")]
        for b in self.order(role):
            for t in range(2):
                d = r(WF[buf] + 4 * b + 2 * t, 2)
                if b == 6:
                    a, o = vHA + s, ks * WREG + 256 * t
                else:
                    a, o = vWA + 2 * s + (b & 1), ks * WREG + 2048 * (b >> 1) + 512 * t
                out.append(ds(f"ds_read_b64_tr_b16 {d}, v{a} offset:{o}", f"w{n}.{b}"))
        return out

    def order(self, role):
        return list(range(7)) if role == "H" else [2, 3, 4, 5, 0, 1]

    def mfma(self, role, n, b):
        buf = n & 1
        w_, x_ = r(WF[buf] + 4 * b), r(XF[buf])
        d = r(16 * b, 16)
        c = d
        if n == 0:
            c = r(vEPS, 16) if (role == "A" and b < 4) else "0"
        if role == "A" and b >= 2:
            return op(f"{MF} {d}, {x_}, {w_}, {c}")
        return op(f"{MF} {d}, {w_}, {x_}, {c}")

    def kloop(self, role, ring_events):
        order = self.order(role)
        nb = len(order)
        post = [[[] for _ in range(nb)] for _ in range(32)]
        pre = [[[] for _ in range(nb)] for _ in range(32)]

        def place(n, groups, lo, hi):
            for x, g in enumerate(groups):
                post[n][lo + x * (hi - lo) // len(groups)].append(g)

        for n in range(32):
            i, ks = divmod(n, 4)
            pre[n][0].append(wlg([f"x{n}"] + [f"w{n}.{b}" for b in order[:2]]))
            pre[n][2].append(wlg([f"w{n}.{b}" for b in order[2:4]]))
            pre[n][4].append(wlg([f"w{n}.{b}" for b in order[4:]]))
            if ks == 3:
                bar = [lg0()]
                if i < 7:
                    bar.append(wvm(f"c{i+1}"))
                bar.append(op("s_barrier"))
                bar += self.stamp(2 + i, 2)
                post[n][1].append(bar)
                if i < 7:
                    place(n, [[x] for x in self.reads(role, n + 1)], 1, nb)
            elif n < 31:
                place(n, [[x] for x in self.reads(role, n + 1)], 0, nb - 1 if ks == 2 else nb)
        for i in range(1, 6):
            g = self.chunk_dma(role, i + 2)
            third = (len(g) + 2) // 3
            for ks in range(3):
                place(4 * i + ks, g[ks * third:(ks + 1) * third], 0, nb)
        for n, groups in ring_events.items():
            place(n, groups, 2 if n % 4 == 3 else 0, nb)
        if role == "A":
            for ks in range(4):
                c = "0" if ks == 0 else r(96, 16)
                post[ks][nb - 1].insert(0, [op(f"{MF} {r(96,16)}, {r(vGF+4*ks)}, {r(XF[ks&1])}, {c}")])
            post[5][0].append([op(f"v_and_b32 v{vU0}, 31, v{vL}"), op(f"v_lshlrev_b32 v{vU0}, 5, v{vU0}"),
                               vm(f"buffer_store_dword v96, v{vU0}, {r(WS,4,'s')}, s{sG} offen sc1", "g")])
        c = []
        for n in range(32):
            for x, b in enumerate(order):
                c += flat(pre[n][x]) + [self.mfma(role, n, b)] + flat(post[n][x])
        return c

    def stage1_start(self, role):
        c = self.role_setup(role)
        c.append(op("s_waitcnt lgkmcnt(0)"))
        if self.cfg.get("stamps"):
            self.nst = max(self.nst, 1)
            c += ops(f"s_mov_b32 s{STAMP0}, s4\ns_mov_b32 s{STAMP0+1}, s6")
        c += flat(self.chunk_dma(role, 0))
        if role == "A":
            c += ops(f"""
            {srd(GT, 1024)}
            v_lshrrev_b32 v{vU0}, 5, v{vL}
            v_lshlrev_b32 v{vU0}, 4, v{vU0}
            """)
            for ks in range(4):
                c.append(vm(f"buffer_load_dwordx4 {r(vGF+4*ks)}, v{vU0}, {r(GT,4,'s')}, s{sXO} offen offset:{32*ks}", "c0"))
        c += flat(self.chunk_dma(role, 1)) + flat(self.chunk_dma(role, 2))
        c += self.late_setup(role)
        if role == "H":
            c += self.nonce_publish(role)
        c += [wvm("c0"), op("s_barrier")] + self.stamp(1, 2)
        if self.cfg.get("dbgend"):
            c += [op("s_memrealtime s[74:75]"), lg0()]
        c += self.reads(role, 0)
        return c

    R1 = [("E", 0), ("E", 1), ("E", 2)] + [("S2", q) for q in range(5)]
    R0 = [("S0", q) for q in range(5)]
    RS1 = [("S1", q) for q in range(5)]

    def plan(self, role):
        p = {}
        seq = self.R1 + self.R0 + (self.RS1 + self.R1 if role == "H" else self.R1 + self.RS1)
        for n, s in enumerate(seq):
            p[("P", n)] = s
        p[("P", 26)], p[("P", 27)] = self.R0[0], self.R0[1]
        for n, s in enumerate(self.R0[2:] + self.RS1):
            p[("O", n)] = s
        return p

    def iss(self, kind, n):
        return self.issue(kind, n, *self.pl[(kind, n)])

    def drn(self, n, wait=True):
        return ([wvm(f"P{n}")] if wait else []) + self.drain("P", n, *self.pl[("P", n)], 8 * n)

    def reiss(self, old, kind, n):
        return [wlg(f"dP{old}")] + self.iss(kind, n)

    def ring_kloop(self):
        ev = {}
        ev[24] = [self.iss("P", n) for n in range(0, 3)]
        ev[25] = [self.iss("P", n) for n in range(3, 6)]
        ev[26] = [self.iss("P", n) for n in range(6, 8)] + [self.nonce_load()]
        ev[28] = [self.iss("P", n) for n in range(8, 11)]
        ev[29] = [self.iss("P", n) for n in range(11, 13)]
        ev[30] = [self.drn(0), self.drn(1)]
        return ev

    def silu8(self, a, t):
        c = [op(f"v_mul_f32 v{t+i}, s{sNL}, v{a+i}") for i in range(8)]
        c += [op(f"v_exp_f32 v{t+i}, v{t+i}") for i in range(8)]
        c += [op(f"v_add_f32 v{t+i}, 1.0, v{t+i}") for i in range(8)]
        c += [op(f"v_rcp_f32 v{t+i}, v{t+i}") for i in range(8)]
        c += [op(f"v_mul_f32 v{a+i}, v{a+i}, v{t+i}") for i in range(8)]
        c += [op(f"v_cvt_pk_bf16_f32 v{a+i}, v{a+2*i}, v{a+2*i+1}") for i in range(4)]
        return c

    def phi8(self, a, t):
        c = [op(f"v_fmamk_f32 v{t+i}, v{a+i}, {LOG2E:#x}, v{vU3}") for i in range(8)]
        c += [op(f"v_exp_f32_e64 v{t+i}, v{t+i} clamp") for i in range(8)]
        c += [op(f"v_max_f32 v{a+i}, v{vEPS}, v{a+i}") for i in range(8)]
        c += [op(f"v_add_f32 v{a+i}, v{a+i}, v{t+i}") for i in range(8)]
        c += [op(f"v_cvt_pk_bf16_f32 v{a+i}, v{a+2*i}, v{a+2*i+1}") for i in range(4)]
        return c

    @staticmethod
    def weave(body, groups):
        if not groups:
            return list(body)
        out, n = [], len(body)
        pos = {}
        for x, g in enumerate(groups):
            pos.setdefault(x * n // len(groups), []).append(g)
        for i, it in enumerate(body):
            out += flat(pos.get(i, []))
            out.append(it)
        return out

    def flag(self, v):
        return [op(f"v_mov_b32 v{vU0}, s{sN}"), vm0(),
                vm(f"buffer_store_dword v{vU0}, v{v}, {r(WS,4,'s')}, 0 offen sc1", "flag")]

    def last_drains(self, first):
        c = []
        for n in list(range(first, first + 8)) + [26, 27]:
            c += self.drn(n)
        return c + [lg0(), op("s_barrier")]

    def epi_H(self):
        fill = {
            0: [self.iss("P", n) for n in range(13, 18)],
            1: [self.drn(n) for n in range(2, 8)],
            2: [self.reiss(n, "P", 18 + n) for n in range(8)],
            3: [self.drn(n) for n in range(8, 13)],
            4: [self.reiss(8, "P", 26), self.reiss(9, "P", 27)] + [self.reiss(10 + n, "O", n) for n in range(3)],
            5: [self.drn(n) for n in range(13, 18)],
            6: [self.reiss(13 + n, "O", 3 + n) for n in range(5)],
        }
        c = []
        pend = []
        for u in range(14):
            b, hf = divmod(u, 2)
            a = 16 * b + 8 * hf
            c += self.weave(self.silu8(a, WF[0] + 8 * (u & 1)), fill.get(u, []))
            if b < 6:
                so, imm = sHL, 1024 * (u & 3)
            else:
                so, imm = sHH, 1024 * hf
            st = [vm(f"buffer_store_dwordx4 {r(a)}, v{vST}, {r(WS,4,'s')}, s{so} offen offset:{imm} sc1", "h")]
            if b < 6 and (u & 3) == 3:
                st.append(op(f"s_add_u32 s{sHL}, s{sHL}, 4096"))
            pend += st
            if u >= self.cfg.get("first_store", 6):
                c += pend
                pend = []
        c += self.nonce_get("H") + self.stamp(2) + self.flag(vFL) + self.stamp(3) + self.last_drains(18)
        return c

    def epi_A(self):
        T = WF[0]
        c = ops(f"v_mov_b32 v{vU3}, {NEPSL:#x}")
        c += [op(f"v_mov_b32 v{vGF+i}, 0x3f803f80") for i in range(4)]
        fill = {0: [self.drn(n) for n in range(2, 8)], 1: [self.reiss(n, "P", 13 + n) for n in range(8)],
                2: [self.drn(n) for n in range(8, 13)]}
        D1, D2 = (128, 144), (160, 96)
        for b in range(2):
            for hf in range(2):
                c += self.weave(self.phi8(32 + 16 * b + 8 * hf, T + 8 * hf), fill.get(2 * b + hf, []))
                a = 64 + 16 * b + 8 * hf
                c += [op(f"v_cvt_pk_bf16_f32 v{a+i}, v{a+2*i}, v{a+2*i+1}") for i in range(4)]
            for hf in range(2):
                pk, vv = r(32 + 16 * b + 8 * hf), r(64 + 16 * b + 8 * hf)
                c.append(op(f"{MF} {r(D1[b],16)}, {pk}, {vv}, {r(D1[b],16) if hf else 0}"))
                c.append(op(f"{MF} {r(D2[b],16)}, {pk}, {r(vGF)}, {r(D2[b],16) if hf else 0}"))
        c += ops(f"""
        v_and_b32 v{vU0}, 16, v{vL}
        v_cmp_eq_u32 vcc, 0, v{vU0}
        s_lshl_b32 s{sA}, s{sW}, 11
        s_add_u32 s{sA}, s{sA}, {SLOT}
        v_add_u32 v{vU0}, s{sA}, v{vL16}
        s_add_u32 s{sA}, s{sLB}, {SLOT}
        v_add_u32 v{vU1}, s{sA}, v{vL16}
        """)
        for b in range(2):
            for i in range(16):
                f, t = (D2[b] + i, D1[b] + i) if i < 8 else (D1[b] + i, D2[b] + i)
                c.append(op(f"v_cndmask_b32 v{D1[b]+i}, v{f}, v{t}, vcc"))
            for q in range(4):
                c.append(ds(f"ds_write_b128 v{vU0}, {r(D1[b]+4*q)} offset:{(2*b+(q>>1))*WREG + 1024*(q&1)}", "kw"))
        c += [lg0(), op("s_barrier")]
        for s in range(8):
            c.append(ds(f"ds_read_b128 {r(128+4*s)}, v{vU1} offset:{1024*s}", f"kr{s}"))
        c += ops(f"""
        s_lshl_b32 s{sA}, s{sJ}, 4
        s_add_u32 s{sA}, s{sA}, s{sRB}
        s_lshl_b32 s{sA}, s{sA}, 13
        s_lshl_b32 s{sB}, s{sW}, 11
        s_add_u32 s{sA}, s{sA}, s{sB}
        s_add_u32 s{sA}, s{sA}, {WS_KVP}
        s_lshl_b32 s{sB}, s{sJ}, 2
        s_add_u32 s{sB}, s{sB}, s{sW}
        s_lshl_b32 s{sB}, s{sB}, 8
        s_lshl_b32 s{sTM}, s{sRB}, 2
        s_add_u32 s{sB}, s{sB}, s{sTM}
        s_add_u32 s{sB}, s{sB}, {WS_F2}
        v_mov_b32 v{vU2}, s{sB}
        """)
        c.append(wlg("kr3"))
        c += [op(f"v_add_f32 v{128+i}, v{128+i}, v{136+i}") for i in range(8)]
        c.append(wlg("kr7"))
        c += [op(f"v_add_f32 v{144+i}, v{144+i}, v{152+i}") for i in range(8)]
        c += [op(f"v_add_f32 v{128+i}, v{128+i}, v{144+i}") for i in range(8)]
        for hf in range(2):
            c.append(vm(f"buffer_store_dwordx4 {r(128+4*hf)}, v{vL16}, {r(WS,4,'s')}, s{sA} offen offset:{1024*hf} sc1", "kvp"))
        c += self.nonce_get("A")
        q = self.phi8(0, T) + self.phi8(8, T + 8)
        c += q + self.stamp(2) + self.flag(vU2)
        fill2 = [self.iss("P", n) for n in range(21, 26)]
        fill2 += [self.reiss(8, "P", 26), self.reiss(9, "P", 27)] + [self.reiss(10 + n, "O", n) for n in range(3)]
        c += self.weave(self.phi8(16, T) + self.phi8(24, T + 8), fill2)
        c += flat([self.drn(n) for n in range(21, 26)])
        c += flat([self.reiss(21 + n, "O", 3 + n) for n in range(5)])
        for u in range(4):
            c.append(vm(f"buffer_store_dwordx4 {r(8*u)}, v{vST}, {r(WS,4,'s')}, 0 offen offset:{1024*u} sc1", "pq"))
        c += self.flag(vFL) + self.stamp(3) + self.last_drains(13)
        chk = f"v_cmp_ne_u32 vcc, s{sN}, v{vU1}\ns_nop 4\ns_cmp_eq_u64 vcc, 0"
        lab = self.spin(f"buffer_load_dword v{vU1}, v{vU0}, {r(WS,4,'s')}, 0 offen sc1", chk, "L_kvok")
        c += ops(f"""
        s_cmp_lg_u32 s{sW}, 0
        s_cbranch_scc1 L_s2
        s_lshr_b32 s{sTM}, s{sRB}, 2
        s_lshl_b32 s{sB}, s{sJ}, 2
        s_add_u32 s{sB}, s{sB}, s{sTM}
        s_lshl_b32 s{sA}, s{sB}, 8
        s_add_u32 s{sA}, s{sA}, {WS_F2}
        v_and_b32 v{vU0}, 15, v{vL}
        v_lshlrev_b32 v{vU0}, 2, v{vU0}
        v_add_u32 v{vU0}, s{sA}, v{vU0}
        v_lshrrev_b32 v{vU2}, 2, v{vL}
        v_lshlrev_b32 v{vU2}, 4, v{vU2}
        v_bfe_u32 v{vU3}, v{vL}, 1, 1
        v_lshl_add_u32 v{vU2}, v{vU3}, 10, v{vU2}
        v_and_b32 v{vU3}, 1, v{vL}
        v_lshl_add_u32 v{vU2}, v{vU3}, 3, v{vU2}
        s_lshl_b32 s{sA}, s{sJ}, 17
        s_lshl_b32 s{sTM}, s{sTM}, 11
        s_add_u32 s{sA}, s{sA}, s{sTM}
        s_and_b32 s{sTM}, s{sRB}, 3
        s_lshl_b32 s{sTM}, s{sTM}, 8
        s_add_u32 s{sA}, s{sA}, s{sTM}
        s_add_u32 s{sA}, s{sA}, {WS_KVP}
        s_lshl_b32 s{sB}, s{sB}, 10
        s_add_u32 s{sB}, s{sB}, s{sTM}
        s_add_u32 s{sB}, s{sB}, {WS_KVT}
        s_branch {lab}
        """)
        c += [label("L_kvok"), reset()]
        for p in range(16):
            c.append(vm(f"buffer_load_dwordx2 {r(2*p,2)}, v{vU2}, {r(WS,4,'s')}, s{sA} offen sc1", f"kp{p}"))
            c.append(op(f"s_add_u32 s{sA}, s{sA}, 8192"))
        c += ops(f"""
        v_lshlrev_b32 v{vU2}, 2, v{vL}
        v_and_b32 v{vU1}, 7, v{vL}
        s_lshl_b32 s{sA}, s{sJ}, 8
        s_lshl_b32 s{sTM}, s{sRB}, 2
        s_add_u32 s{sA}, s{sA}, s{sTM}
        s_add_u32 s{sA}, s{sA}, {WS_F3}
        v_lshlrev_b32 v{vU1}, 11, v{vU1}
        v_add_u32 v{vU1}, s{sA}, v{vU1}
        """)
        c.append(vm0())
        for st in (16, 8, 4, 2):
            c += [op(f"v_add_f32 v{i}, v{i}, v{i+st}") for i in range(st)]
        c.append(op("v_cvt_pk_bf16_f32 v0, v0, v1"))
        c.append(vm(f"buffer_store_dword v0, v{vU2}, {r(WS,4,'s')}, s{sB} offen sc1", "kvt"))
        c += self.flag(vU1)
        return c

    def stage2(self):
        cfg = self.cfg
        D = 16
        a_iss, a_chk = cfg.get("poll_at", 4), cfg.get("chk_at", 20)
        c = [label("L_s2"), reset()]
        c += ops(f"""
        v_lshrrev_b32 v{vU3}, 4, v{vL16}
        s_mul_i32 s{sA}, s{sT}, {2*112*1024}
        v_add_u32 v{vHV}, s{sA}, v{vL16}
        v_add_u32 v{vHV+1}, {112*1024}, v{vHV}
        v_and_b32 v{vU0}, 15, v{vU3}
        v_lshlrev_b32 v{vU0}, 2, v{vU0}
        v_bfe_u32 v{vU1}, v{vU3}, 4, 1
        v_lshl_add_u32 v{vU0}, v{vU1}, 8, v{vU0}
        s_lshl_b32 s{sA}, s{sT}, 9
        s_add_u32 s{sA}, s{sA}, {WS_F1}
        v_add_u32 v{vFA}, s{sA}, v{vU0}
        s_lshl_b32 s{sA}, s{sE}, 11
        s_lshl_b32 s{sB}, s{sW}, 9
        s_add_u32 s{sA}, s{sA}, s{sB}
        s_add_u32 s{sA}, s{sA}, {WS_F3}
        v_add_u32 v{vU0}, s{sA}, v{vU0}
        v_cmp_gt_u32 vcc, 32, v{vU3}
        s_lshl_b32 s{sA}, s{sW}, 1
        s_lshl_b32 s{sM1}, 0x30003, s{sA}
        s_mov_b32 s{sM1+1}, 0
        s_mov_b32 s{sM2}, 0xff00ff00
        s_mov_b32 s{sM2+1}, -1
        v_cndmask_b32 v{vFB}, v{vU0}, v{vFA}, vcc
        """)

        def chk(m):
            return (f"v_cmp_eq_u32 vcc, s{sN}, v{vN}\ns_nop 4\ns_and_b64 s[{sTM}:{sTM+1}], vcc, s[{m}:{m+1}]\n"
                    f"s_cmp_eq_u64 s[{sTM}:{sTM+1}], s[{m}:{m+1}]")
        lab = self.spin(f"buffer_load_dword v{vN}, v{vFA}, {r(WS,4,'s')}, 0 offen sc1", chk(sM1), "L_hok")
        c += [op(f"s_branch {lab}"), label("L_hok"), reset()]
        c += self.stamp(4)

        def hload(i):
            s = RING + 8 * (i % D)
            g = [vm(f"buffer_load_dwordx4 {r(s+4*x)}, v{vHV+x}, {r(WS,4,'s')}, s{sH} offen sc1", f"h{i}") for x in range(2)]
            g += ops(f"s_add_u32 s{sH}, s{sH}, 1024\ns_cmp_eq_u32 s{sH}, s{sHE}\ns_cselect_b32 s{sH}, s{sHS}, s{sH}")
            return g

        def wo_reg(n):
            return 224 + 8 * n if n < 4 else 8 * (n - 4)

        def pq_reg(n, i):
            return RING + 8 * ((12 + n) % D) + 4 * i

        for i in range(D):
            c += hload(i)
        GL = 224
        late = []
        late.append(ops(f"""
        s_lshl_b32 s{sA}, s{sW}, 13
        s_add_u32 s{sB}, s{sA}, {WS_KVT}
        s_lshl_b32 s{sTM}, s{sT}, 16
        s_add_u32 s{sA}, s{sA}, s{sTM}
        s_add_u32 s{sA}, s{sA}, {WS_PQ}
        v_and_b32 v{vU0}, 0x1f0, v{vL16}
        v_lshlrev_b32 v{vU0}, 1, v{vU0}
        s_lshl_b32 s{sG}, s{sT}, 11
        s_add_u32 s{sG}, s{sG}, {WS_G}
        v_add_u32 v{vU1}, 32768, v{vL16}
        """))
        late.append([vm(f"buffer_load_dwordx4 {r(GL+8*i+4*x)}, v{vU0}, {r(WS,4,'s')}, s{sG} offen offset:{1024*i+16*x} sc1", "gl")
                     for i in range(2) for x in range(2)])
        for n in range(8):
            g = []
            if n == 4:
                g += ops(f"s_add_u32 s{sA}, s{sA}, 4096\ns_add_u32 s{sB}, s{sB}, 4096")
            o = 1024 * (n & 3)
            g.append(vm(f"buffer_load_dwordx4 {r(KV+4*n)}, v{vL16}, {r(WS,4,'s')}, s{sB} offen offset:{o} sc1", f"q{n}"))
            g.append(vm(f"buffer_load_dwordx4 {r(pq_reg(n,0))}, v{vL16}, {r(WS,4,'s')}, s{sA} offen offset:{o} sc1", f"q{n}"))
            g.append(vm(f"buffer_load_dwordx4 {r(pq_reg(n,1))}, v{vU1}, {r(WS,4,'s')}, s{sA} offen offset:{o} sc1", f"q{n}"))
            late.append(g)
        lab2 = self.spin(f"buffer_load_dword v{vN}, v{vFB}, {r(WS,4,'s')}, 0 offen sc1", chk(sM2), "L_aok")
        for i in range(28):
            s = RING + 8 * (i % D)
            fill = [[] for _ in range(4)]
            if i + D < 28:
                fill[3] += hload(i + D)
            if i == a_iss:
                fill[3].append(vm(f"buffer_load_dword v{vN}, v{vFB}, {r(WS,4,'s')}, 0 offen sc1", "poll"))
            if i < 4 or 4 <= i - 1 < 8:
                n = i if i < 4 else i - 1
                dr = self.drain("O", n, *self.pl[("O", n)], wo_reg(n))
                for x in range(4):
                    fill[x].append(dr[x])
            if i == a_chk:
                fill[0] += [wvm("poll")] + ops(chk(sM2)) + [op(f"s_cbranch_scc0 {lab2}"), label("L_aok")]
                for x, g in enumerate(late):
                    fill[min(3, x // 3)] += g
            c.append(wvm(f"h{i}"))
            for x in range(4):
                ii, nb = x >> 1, x & 1
                acc = r(32 * ii + 16 * nb, 16)
                c.append(op(f"{MF} {acc}, {r(8*i+4*nb,4,'a')}, {r(s+4*ii)}, {acc if i else 0}"))
                c += fill[x]
        c += self.stamp(5)
        gate = [wvm("gl")]
        for ii in range(2):
            b = GL + 8 * ii
            gate += [op(f"v_add_f32 v{b+x}, v{b+x}, v{b+4+x}") for x in range(4)]
            gate += ops(f"""
            v_add_f32 v{b}, v{b}, v{b+2}
            v_add_f32 v{b+1}, v{b+1}, v{b+3}
            v_add_f32 v{b}, v{b}, v{b+1}
            v_mul_f32 v{b}, s{sNL}, v{b}
            v_exp_f32 v{b}, v{b}
            v_add_f32 v{b}, 1.0, v{b}
            v_rcp_f32 v{vG+ii}, v{b}
            """)
        gate += [op(f"v_sub_f32 v{GL+ii}, 1.0, v{vG+ii}") for ii in range(2)]
        OB = [[RING + 8 * 4 + 32 * p + 16 * ii for ii in range(2)] for p in range(2)]

        def o_mfma(n):
            return [[wvm(f"q{n}"), op(f"{MF} {r(OB[n&1][ii],16)}, {r(KV+4*n)}, {r(pq_reg(n,ii))}, 0")] for ii in range(2)]

        def proc(n):
            out = []
            for ii in range(2):
                base = OB[n & 1][ii]
                num, den = (base, base + 8) if n % 2 == 0 else (base + 8, base)
                t = vQ + ii
                out += ops(f"v_add_f32 v{t}, {EPS:#x}, v{den}\nv_rcp_f32 v{t}, v{t}\nv_mul_f32 v{t}, v{t}, v{vG+ii}")
                out += [op(f"v_mul_f32 v{num+x}, v{num+x}, v{t}") for x in range(8)]
                out += [op(f"v_cvt_pk_bf16_f32 v{num+x}, v{num+2*x}, v{num+2*x+1}") for x in range(4)]
            return out

        def w_mfma(n):
            out = []
            for ii in range(2):
                base = OB[n & 1][ii] + (0 if n % 2 == 0 else 8)
                for nb in range(2):
                    acc = r(32 * ii + 16 * nb, 16)
                    out.append([op(f"{MF} {acc}, {r(wo_reg(n)+4*nb,4,'a')}, {r(base)}, {acc}")])
            return out

        def mix(mfs, valu):
            out, k = [], len(mfs)
            for x, m in enumerate(mfs):
                out += m + valu[x * len(valu) // k:(x + 1) * len(valu) // k]
            return out

        scale = [op(f"v_mul_f32 v{32*ii+x}, v{32*ii+x}, v{GL+ii}") for ii in range(2) for x in range(32)]
        c += gate + [lg0()]
        c += mix(o_mfma(0) + o_mfma(1), scale) + proc(0)
        for n in range(8):
            m = w_mfma(n) + (o_mfma(n + 2) if n + 2 < 8 else [])
            c += mix(m, proc(n + 1) if n + 1 < 8 else [])
        c += self.stamp(6)
        c += ops(f"""
        v_lshrrev_b32 v{vU3}, 4, v{vL16}
        v_and_b32 v{vU0}, 31, v{vU3}
        v_lshrrev_b32 v{vU1}, 5, v{vU3}
        v_and_b32 v{vU2}, 7, v{vU3}
        v_xor_b32 v{vU1}, v{vU1}, v{vU2}
        v_lshlrev_b32 v{vU1}, 4, v{vU1}
        v_lshl_add_u32 v{vU0}, v{vU0}, 8, v{vU1}
        s_lshl_b32 s{sA}, s{sW}, 14
        s_add_u32 s{sA}, s{sA}, {RED}
        v_add_u32 v64, s{sA}, v{vU0}
        v_xor_b32 v65, 32, v64
        v_xor_b32 v66, 64, v64
        v_xor_b32 v67, 96, v64
        v_lshrrev_b32 v{vU1}, 3, v{vU3}
        v_lshlrev_b32 v{vU0}, 1, v{vU2}
        v_xor_b32 v{vU0}, v{vU0}, v{vU1}
        v_lshlrev_b32 v{vU0}, 4, v{vU0}
        v_lshl_add_u32 v{vU0}, v{vU1}, 8, v{vU0}
        s_lshl_b32 s{sA}, s{sW}, 11
        s_add_u32 s{sA}, s{sA}, {RED}
        v_add_u32 v68, s{sA}, v{vU0}
        v_xor_b32 v69, 16, v68
        v_lshlrev_b32 v{vU1}, 10, v{vU1}
        v_lshl_add_u32 v70, v{vU2}, 4, v{vU1}
        s_lshl_b32 s{sA}, s{sT}, 16
        s_lshl_b32 s{sB}, s{sW}, 13
        s_add_u32 s{sA}, s{sA}, s{sB}
        s_lshl_b32 s{sB}, s{sTN}, 7
        s_add_u32 s{sA}, s{sA}, s{sB}
        s_add_u32 s{sB}, s{sA}, 32768
        """)
        for ii in range(2):
            for nb in range(2):
                for j in range(4):
                    c.append(ds(f"ds_write_b128 v{64+j}, {r(32*ii+16*nb+4*j)} offset:{8192*ii+128*nb}", "rw"))
        c += [lg0(), op("s_barrier")]
        for ii in range(2):
            for p in range(4):
                for z in range(2):
                    c.append(ds(f"ds_read_b128 {r(32*ii+8*p+4*z)}, v{68+z} offset:{16384*p+8192*ii}", f"rr{ii}.{p}"))
        for ii in range(2):
            b = 32 * ii
            c.append(wlg(f"rr{ii}.1"))
            c += [op(f"v_add_f32 v{b+x}, v{b+x}, v{b+8+x}") for x in range(8)]
            c.append(wlg(f"rr{ii}.3"))
            c += [op(f"v_add_f32 v{b+16+x}, v{b+16+x}, v{b+24+x}") for x in range(8)]
            c += [op(f"v_add_f32 v{b+x}, v{b+x}, v{b+16+x}") for x in range(8)]
            c += [op(f"v_cvt_pk_bf16_f32 v{b+x}, v{b+2*x}, v{b+2*x+1}") for x in range(4)]
            c.append(vm(f"buffer_store_dwordx4 {r(b)}, v70, {r(OUT,4,'s')}, s{sA if ii == 0 else sB} offen", "o"))
        if cfg.get("stamps"):
            c += [vm0()] + self.stamp(7) + self.stamp(10, 2)
            c += ops(f"""
            s_cmp_lg_u32 s{sW}, {cfg.get('stamp_wave', 0)}
            s_cbranch_scc1 L_end
            s_lshl_b32 s{sA}, s2, 8
            s_add_u32 s{sA}, s{sA}, {WS_STAMP}
            v_mov_b32 v2, 0
            """)
            for k in range(self.nst):
                c += ops(f"v_mov_b32 v0, s{STAMP0+2*k}\nv_mov_b32 v1, s{STAMP0+2*k+1}\n"
                         f"buffer_store_dwordx2 v[0:1], v2, {r(WS,4,'s')}, s{sA} offen offset:{8*k}\ns_nop 1")
        if cfg.get("dbgend"):
            c += [vm0()] + ops(f"""
            s_memrealtime s[6:7]
            s_and_b32 s{sA}, s2, 0x77
            s_or_b32 s{sA}, s{sA}, s{sW}
            s_cmp_lg_u32 s{sA}, 0
            s_cbranch_scc1 L_end
            s_lshr_b32 s{sA}, s2, 3
            s_and_b32 s{sA}, s{sA}, 1
            s_lshr_b32 s{sB}, s2, 6
            s_or_b32 s{sA}, s{sA}, s{sB}
            s_lshl_b32 s{sA}, s{sA}, 4
            s_add_u32 s{sA}, s{sA}, 4
            s_waitcnt lgkmcnt(0)
            s_sub_u32 s4, s4, s{sN}
            s_sub_u32 s74, s74, s{sN}
            s_sub_u32 s6, s6, s{sN}
            v_mov_b32 v0, s4
            v_mov_b32 v1, s74
            v_mov_b32 v2, s6
            buffer_store_dwordx3 v[0:2], off, {r(DBG,4,'s')}, s{sA}
            """)
        c += [label("L_end"), op("s_endpgm")]
        return c

    def build(self):
        self.pl = self.plan("H")
        c = self.head()
        c += self.stage1_start("H") + self.kloop("H", self.ring_kloop()) + self.stamp(1) + self.epi_H()
        c += [op("s_branch L_s2"), label("L_A"), reset()]
        self.pl = self.plan("A")
        c += self.stage1_start("A") + self.kloop("A", self.ring_kloop()) + self.stamp(1) + self.epi_A()
        c += self.stage2()
        c += self.tail
        lines, added = pad(resolve(flat(c)))
        hdr = open(f"cdna_kernels/{NAME}.s.ref").read().split("; Override launch")[0]
        s = hdr + "; @launch grid=(256,1,1) block=(256,1,1) lds=163840\n"
        s += f'.amdgcn_target "amdgcn-amd-amdhsa--gfx950"\n.text\n.globl {K}\n.p2align 8\n.type {K},@function\n{K}:\n'
        s += text(lines)
        s += '.section .rodata,"a"\n.p2align 6\n' + descriptor(K, 512, 256, 102)
        return s, added, len(lines)


def main():
    out = sys.argv[1]
    cfg = {}
    for a in sys.argv[2:]:
        k, _, v = a.partition("=")
        cfg[k] = int(v) if v else 1
    s, added, n = Gen(cfg).build()
    open(out, "w").write(s)
    print(out, "lines", n, "nop states", added)


if __name__ == "__main__":
    main()
```

```python
import copy
import re

TRANS = ("v_exp_f32", "v_rcp_f32", "v_log_f32", "v_rsq_f32", "v_sqrt_f32")


class I:
    __slots__ = ("kind", "text", "tag")

    def __init__(self, kind, text=None, tag=None):
        self.kind, self.text, self.tag = kind, text, tag


def op(t): return I("op", t)
def vm(t, tag=None): return I("vm", t, tag)
def ds(t, tag=None): return I("ds", t, tag)
def wvm(tag): return I("wvm", None, tag)
def wlg(tag): return I("wlg", None, tag)
def vm0(): return I("wvm", None, "*")
def lg0(): return I("wlg", None, "*")
def label(n): return I("label", n)
def reset(): return I("reset")
def save(n): return I("save", n)
def restore(n): return I("restore", n)


def ops(text):
    return [op(l.strip()) for l in text.strip().split("\n") if l.strip()]


def flat(x):
    out = []
    for e in x:
        if isinstance(e, (list, tuple)):
            out += flat(e)
        elif isinstance(e, str):
            out += ops(e)
        elif e is not None:
            out.append(e)
    return out


def spread(slots, groups, lo=0, hi=None):
    hi = len(slots) if hi is None else hi
    n = hi - lo
    for i, g in enumerate(groups):
        slots[lo + i * n // len(groups)].append(g)


class Counter:
    def __init__(self, name, cap):
        self.name, self.cap = name, cap
        self.q = []
        self.done = 0
        self.seen = set()

    def issue(self, tag):
        self.q.append(tag)
        if tag is not None:
            self.seen.add(tag)

    def wait(self, tag):
        if tag == "*":
            self.done = len(self.q)
            return 0
        tags = tag if isinstance(tag, (list, tuple, set)) else [tag]
        idx = -1
        for t in tags:
            assert t in self.seen, f"{self.name}: wait on tag never issued: {t}"
            for i in range(len(self.q) - 1, -1, -1):
                if self.q[i] == t:
                    idx = max(idx, i)
                    break
        if idx < self.done:
            return None
        n = len(self.q) - 1 - idx
        if n > self.cap:
            n = self.cap
        self.done = len(self.q) - n
        return n


def resolve(items):
    v, l = Counter("vm", 63), Counter("lg", 15)
    out = []
    snaps = {}
    for it in items:
        k = it.kind
        if k == "save":
            snaps[it.text] = copy.deepcopy((v, l))
        elif k == "restore":
            v, l = copy.deepcopy(snaps[it.text])
        elif k in ("op", "raw"):
            out.append(it.text)
        elif k == "label":
            out.append(it.text + ":")
        elif k == "vm":
            v.issue(it.tag); out.append(it.text)
        elif k == "ds":
            l.issue(it.tag); out.append(it.text)
        elif k == "reset":
            v.q, v.done, l.q, l.done = [], 0, [], 0
        elif k in ("wvm", "wlg"):
            c = v if k == "wvm" else l
            n = c.wait(it.tag)
            if n is None:
                continue
            name = "vmcnt" if k == "wvm" else "lgkmcnt"
            if out and out[-1].startswith("s_waitcnt") and name not in out[-1]:
                out[-1] += f" {name}({n})"
            else:
                out.append(f"s_waitcnt {name}({n})")
    return out


REG = re.compile(r"^-?\|?([vas])(\d+)\|?$|^-?([vas])\[(\d+):(\d+)\]$")


def regs(tok):
    tok = tok.strip()
    if tok == "vcc":
        return {("s", 106), ("s", 107)}
    if tok == "exec":
        return {("x", 0)}
    if tok == "m0":
        return {("m", 0)}
    m = REG.match(tok)
    if not m:
        return set()
    if m.group(1):
        return {(m.group(1), int(m.group(2)))}
    return {(m.group(3), i) for i in range(int(m.group(4)), int(m.group(5)) + 1)}


def decode(line):
    mn, _, rest = line.partition(" ")
    toks = [t.strip() for t in rest.split(",")] if rest else []
    if toks:
        toks[-1] = toks[-1].split(" ")[0]
    R = [regs(t) for t in toks]
    U = lambda xs: set().union(*xs) if xs else set()
    if mn.startswith("v_mfma"):
        return "mfma", R[0], U(R[1:]), {"c": R[3], "ab": R[1] | R[2]}
    if mn.startswith("buffer_") or mn.startswith("global_"):
        if "store" in mn:
            data = R[0] if mn.startswith("buffer_") else R[1]
            return "vmem", set(), U(R), {"wide": data if ("x4" in mn or "x3" in mn) else set()}
        if " lds" in line:
            return "vmem", set(), U(R) | {("m", 0)}, {}
        return "vmem", R[0], U(R[1:]), {}
    if mn.startswith("ds_"):
        if "write" in mn:
            return "ds", set(), U(R), {}
        return "ds", R[0], U(R[1:]), {}
    if mn.startswith("v_"):
        w, r = set(R[0]), U(R[1:])
        if mn.startswith("v_cmp") and mn.startswith("v_cmpx"):
            w |= {("x", 0)}
        if "_co_" in mn:
            w |= R[1]; r = U(R[2:])
        if mn.startswith("v_cndmask") and len(toks) == 3:
            r |= regs("vcc")
        if mn.startswith("v_permlane"):
            w |= R[1]; r |= R[0]
        if mn.startswith(("v_fmac", "v_dot2c", "v_writelane")):
            r |= R[0]
        base = mn.replace("_e32", "").replace("_e64", "")
        return "valu", w, r, {"trans": base in TRANS, "lane": mn.startswith(("v_readfirstlane", "v_readlane")),
                              "perm": mn.startswith("v_permlane"), "dpp": "row_" in line or "quad_perm" in line}
    if mn == "s_nop":
        return "nop", set(), set(), {"n": int(toks[0]) + 1}
    if mn.startswith("s_"):
        if mn.startswith(("s_cmp", "s_waitcnt", "s_barrier", "s_branch", "s_cbranch", "s_endpgm", "s_setprio", "s_sleep", "s_bitcmp")):
            return "salu", set(), U(R), {}
        w = set(R[0]) if R else set()
        if "saveexec" in mn:
            w |= {("x", 0)}
        return "salu", w, U(R[1:]), {}
    raise ValueError("cannot decode: " + line)


def need(p, c):
    pk, pw, pr, pe = p
    ck, cw, cr, ce = c
    n = 0
    vec = lambda s: {x for x in s if x[0] in "va"}
    sg = lambda s: {x for x in s if x[0] == "s"}
    if pk == "valu":
        if ck == "mfma" and vec(pw) & cr: n = max(n, 2)
        if ck == "mfma" and ("x", 0) in pw: n = max(n, 4)
        if ck == "valu":
            if pe["trans"] and not ce["trans"] and pw & cr: n = max(n, 1)
            if pe["trans"] and ce["trans"] and pw & cr: n = max(n, 1)
            if sg(pw) & cr: n = max(n, 2)
            if ce["lane"] and vec(pw) & cr: n = max(n, 1)
            if (ce["perm"] or ce["dpp"]) and vec(pw) & cr: n = max(n, 2)
            if ("x", 0) in pw and (ce["lane"] or ce["perm"]): n = max(n, 4)
        if ck == "vmem" and sg(pw) & cr: n = max(n, 5)
    if pk == "mfma":
        if ck == "mfma":
            if pw & ce["ab"]: n = max(n, 12)
            if pw & ce["c"] and pw != ce["c"]: n = max(n, 10)
            if pw & cw and pw != ce["c"]: n = max(n, 12)
        elif ck in ("valu", "vmem", "ds"):
            if pw & (cr | cw): n = max(n, 12)
            if ck == "valu" and pe["c"] & cw: n = max(n, 7)
    if pk == "salu" and ("m", 0) in pw and ck == "vmem" and ("m", 0) in cr: n = max(n, 1)
    if pk == "vmem" and pe.get("wide") and pe["wide"] & cw: n = max(n, 2)
    return n


def pad(lines):
    out, hist = [], []
    added = 0
    for ln in lines:
        if ln.endswith(":") or ln.startswith((".", ";")):
            out.append(ln)
            continue
        d = decode(ln)
        dist, req = 0, 0
        for h in reversed(hist):
            if h[0] != "nop":
                req = max(req, need(h, d) - dist)
            dist += h[3]["n"] if h[0] == "nop" else 1
            if dist >= 20:
                break
        while req > 0:
            k = min(req, 16)
            out.append(f"s_nop {k-1}")
            hist.append(("nop", set(), set(), {"n": k}))
            added += k
            req -= k
        out.append(ln)
        hist.append(d)
        hist = hist[-24:]
        if ln.startswith(("s_branch", "s_endpgm")):
            hist = []
    return out, added


def text(lines):
    return "\n".join(l if l.endswith(":") or l.startswith((".", ";")) else "    " + l for l in lines) + "\n"
```

```python
import copy
import sys
from prog import op, vm, ds, wvm, wlg, vm0, lg0, label, reset, save, restore, ops, flat, resolve, pad, text, TRANS
from asmlib import descriptor

NAME = "gated_mix__linear_attn_block__dense_activation_silu__prompt"
K = NAME + "_kernel"
MF = "v_mfma_f32_32x32x16_bf16"

WS_H, WS_PQ, WS_KVP, WS_KVT = 0, 8 << 20, 10 << 20, 11 << 20
WS_G = WS_KVT + 65536
WS_F1 = 12 << 20
WS_F2 = WS_F1 + 16384
WS_F3 = WS_F1 + 32768
WS_STAMP = 128 << 20
SLOT, WREG = 32768, 8192

X, W, W2, WO, WS, OUT, GT, DBG = 8, 12, 16, 20, 24, 28, 32, 36
sW, sRB, sJ, sC, sXO, sWO, sLB, sN = 40, 41, 42, 43, 44, 45, 46, 47
sPT, sT, sTN, sA, sB, sSP, sNL, sE = 48, 49, 50, 51, 52, 53, 54, 55
sR, sH0, sH1, sHL, sTM = 56, 57, 58, 59, 60
sHH, sG = 62, 63
EQ, LQ, OQ = 64, 68, 72
mE, mL, mA, mLA, mSEL = 76, 78, 80, 82, 84
sHV, sPQ, sGA, sF1, sF3, sKP, sRP, sRK, sRT, sR3, sOA, sOB, sGI = range(86, 99)

WF = (112, 128, 144)
TMP, GF, OB = 192, 192, 192
D1, D2 = (160, 176), (192, 96)
vWE, vF2, vXA, vWA, vHA, vXD, vWD = 208, 210, 211, 219, 223, 225, 229
vRP, vRK, vRT, vR3 = 211, 212, 213, 214
vHV, vPQ, vKV, vNV, vF1, vF3 = 225, 227, 229, 230, 231, 232
vPD, vPA = 233, 235
vRW, vRR, vOUT, vBP = 233, 237, 239, 240
vL, vL16, vN, vST, vFL, vS0 = 241, 242, 243, 244, 245, 246
vT0, vT1, vT2 = 248, 249, 250
vONE, vES, vOM = 248, 248, 250
vU0, vU1, vU2, vU3 = 252, 253, 254, 255
RING, XA, KVA = 64, 128, 224

LOG2E, NLOG2E, EPS = 0x3FB8AA3B, 0xBFB8AA3B, 0x358637BD
SPIN = 200000

DEF = dict(rm=3, pre=2, Q=60, Qc=60, Q2=60, B=72, lat=1000, lats=1200, rate=40, rateA=40, rate2=24, dE=500, dL=500,
           dF=300, tE=0, tL=3000, tK=3000, dK=500, nplain=20, pk=0, pstart=12, pmH=0, pmA=0, latP=0,
           ctlH="fE pE cE fL pL pK cL cK", ctlA1="fA pE cE pL pK cL cK", ctlA0="pF cF ld pE sum fA cE f3 pL pK cL cK")


def r(b, n=4, k="v"):
    return f"{k}[{b}:{b+n-1}]"


def srd(d, nbytes):
    return f"s_mov_b32 s{d+2}, {nbytes:#x}\ns_mov_b32 s{d+3}, 0x20000"


def cvt4(a):
    return [op(f"v_cvt_pk_bf16_f32 v{a+i}, v{a+2*i}, v{a+2*i+1}") for i in range(4)]


class Job:
    def __init__(self, make, hard=None, soft=None, ev=None):
        self.make, self.hard, self.soft, self.ev = make, hard, soft, ev


def after(ev, q="stuck"):
    return lambda s: None if ev in s.at else q


class Stream:
    def __init__(self, cfg):
        self.cfg = cfg
        self.items = []
        self.t = self.mf = self.pf = self.lastv = 0
        self.dv, self.dl, self.at = {}, {}, {}
        self.q = {k: [] for k in ("ctl", "chunk", "hq", "pair", "drain", "valu")}
        self.stage, self.ring, self.held = [], [], {}
        self.Q = cfg["Q"]
        self.m0q = None

    def mark(self, ev):
        self.at.setdefault(ev, self.t)

    def emit(self, x):
        for it in flat([x]):
            self.items.append(it)
            k, s = it.kind, it.text
            if k == "op":
                if s.startswith("v_mfma"):
                    self.t = max(self.t, self.mf)
                    self.mf = self.t + 32
                    self.t += 8
                elif s.startswith("s_nop"):
                    self.t += int(s.split()[1]) + 1
                else:
                    self.t += 8 if s.split()[0].replace("_e64", "") in TRANS else 4
            elif k == "vm":
                self.t = max(self.t + 4, self.pf - self.cfg["B"])
                self.pf = max(self.pf, self.t) + (72 if "x4" in s else 40 if "x2" in s else 30)
                self.lastv = max(self.lastv, self.pf + self.cfg["lats" if "store" in s else "lat"])
                self.dv[it.tag] = self.lastv
            elif k == "ds":
                self.t += 4
                self.dl[it.tag] = self.t + 100
            elif k == "wvm":
                tg = it.tag
                self.t = max([self.t] + ([self.lastv] if tg == "*" else [self.dv[x] for x in (tg if isinstance(tg, list) else [tg])]))
            elif k == "wlg":
                tg = it.tag
                self.t = max([self.t] + (list(self.dl.values()) if tg == "*" else [self.dl[x] for x in (tg if isinstance(tg, list) else [tg])]))

    def run(self, qn):
        j = self.q[qn].pop(0)
        self.emit(j.make(self))
        if j.ev:
            self.mark(j.ev)

    def ok(self, qn):
        q = self.q[qn]
        if not q:
            return False
        j = q[0]
        if qn in ("chunk", "pair") and self.m0q not in (None, qn):
            return False
        return (j.hard is None or j.hard(self) is None) and (j.soft is None or j.soft(self))

    def step(self, lim, valu=True, idle=0):
        back = 0 if self.pf - self.cfg["B"] < idle else self.pf - self.t
        for qn, cap, cond in (("ctl", 2, True), ("chunk", 1, back < self.cfg["Qc"]), ("hq", 1, back < self.Q),
                              ("pair", 1, back < self.Q), ("drain", 1, True)):
            key = "ld" if qn in ("chunk", "hq", "pair") else qn
            if cond and lim.get(key, 0) < cap and self.ok(qn):
                lim[key] = lim.get(key, 0) + 1
                self.run(qn)
                return True
        if valu and self.ok("valu"):
            t0 = self.t
            self.run("valu")
            lim["v"] = lim.get("v", 0) + self.t - t0
            return True
        return False

    def gap(self, rate):
        lim = {}
        while self.step(lim, self.t < self.mf - 4 or lim.get("v", 0) < rate):
            pass

    def force(self, qn):
        assert qn != "stuck" and self.q[qn], f"schedule stuck on {qn}"
        j = self.q[qn][0]
        b = j.hard(self) if j.hard else None
        if qn in ("chunk", "pair") and self.m0q not in (None, qn):
            b = self.m0q
        if b is None:
            self.run(qn)
        else:
            self.force(b)

    def require(self, ev, qn):
        while ev not in self.at:
            if not self.step({}) and not self.step({}, idle=1 << 30):
                self.force(qn)

    def until(self, t):
        while self.t < t and (self.step({}) or self.step({}, idle=t)):
            pass

    def take(self, pool):
        for i, (x, ev) in enumerate(pool):
            if ev is None or ev in self.at:
                return pool.pop(i)[0]
        return None

    def avail(self, pool):
        return any(ev is None or ev in self.at for _, ev in pool)


def single(items, ev=None, soft=None, hard=None):
    items = flat(items)
    out = [Job((lambda it: lambda s: [it])(it)) for it in items]
    out[0].soft, out[0].hard = soft, hard
    out[-1].ev = ev
    return out


def locked(x, q):
    def mk(s):
        s.m0q = q
        return x
    return mk


def relock(make):
    def mk(s):
        x = make(s)
        s.m0q = "chunk"
        return x
    return mk


def later(ev, d):
    return lambda s: ev in s.at and s.t >= s.at[ev] + d


def arrived(tag):
    return lambda s: s.t >= s.dv[tag]


class Gen:
    def __init__(self, cfg):
        self.cfg = dict(DEF, **cfg)
        self.tail = []
        self.uid = 0
        self.log = []

    def lab(self, stem):
        self.uid += 1
        return f"L_{stem}{self.uid}"

    def stamp(self, k, kind=1):
        if self.cfg.get("stamps") != kind and not (self.cfg.get("stamps") and kind == 0):
            return []
        return [op("s_memrealtime s[4:5]"), op("s_memtime s[6:7]"), lg0(),
                op(f"v_writelane_b32 v{vS0}, s4, {k}"), op(f"v_writelane_b32 v{vS0+1}, s6, {k}")]

    def head(self):
        c = ops(f"""
        s_cmp_ge_u32 s2, 256
        s_cbranch_scc1 L_end
        s_load_dwordx2 s[{X}:{X+1}], s[0:1], 0
        s_load_dwordx2 s[{W2}:{W2+1}], s[0:1], 40
        s_load_dwordx2 s[{WO}:{WO+1}], s[0:1], 16
        s_load_dwordx2 s[{WS}:{WS+1}], s[0:1], 72
        s_load_dwordx2 s[{OUT}:{OUT+1}], s[0:1], 56
        s_load_dwordx2 s[{GT}:{GT+1}], s[0:1], 48
        s_load_dwordx2 s[{DBG}:{DBG+1}], s[0:1], 64
        s_memrealtime s[4:5]
        """)
        if self.cfg.get("stamps"):
            c += ops(f"s_memtime s[6:7]\nv_mov_b32 v{vS0}, 0\nv_mov_b32 v{vS0+1}, 0")
        c += ops(f"""
        v_lshrrev_b32 v{vT0}, 6, v0
        v_and_b32 v{vL}, 63, v0
        s_and_b32 s{sE}, s2, 7
        v_readfirstlane_b32 s{sW}, v{vT0}
        s_lshr_b32 s{sR}, s2, 3
        s_and_b32 s{sA}, s{sE}, 1
        s_lshl_b32 s{sA}, s{sA}, 3
        s_and_b32 s{sTN}, s{sR}, 7
        s_add_u32 s{sRB}, s{sTN}, s{sA}
        s_lshr_b32 s{sT}, s{sR}, 3
        s_and_b32 s{sJ}, s{sE}, 6
        s_and_b32 s{sA}, s{sT}, 1
        s_add_u32 s{sJ}, s{sJ}, s{sA}
        s_lshl_b32 s{sLB}, s{sW}, 13
        s_add_u32 s{sC}, s{sRB}, s{sJ}
        {srd(X, 2 << 20)}
        v_lshrrev_b32 v{vT0}, 3, v{vL}
        v_lshrrev_b32 v{vT1}, 4, v{vL}
        v_and_b32 v{vT2}, 7, v{vL}
        v_xor_b32 v{vU0}, v{vT1}, v{vT2}
        s_lshl_b32 s{sA}, s{sRB}, 17
        s_lshl_b32 s{sTM}, s{sW}, 15
        s_add_u32 s{sA}, s{sA}, s{sTM}
        v_lshlrev_b32 v{vU1}, 10, v{vT0}
        v_lshl_add_u32 v{vU0}, v{vU0}, 4, v{vU1}
        v_add_u32 v{vXD}, s{sA}, v{vU0}
        v_xor_b32 v{vU0}, 64, v{vXD}
        v_add_u32 v{vXD+1}, {8192-1024}, v{vU0}
        v_add_u32 v{vXD+2}, {2*(8192-1024)}, v{vXD}
        v_add_u32 v{vXD+3}, {3*(8192-1024)}, v{vU0}
        v_and_b32 v{vT1}, 1, v{vT1}
        v_lshlrev_b32 v{vT1}, 2, v{vT1}
        v_xor_b32 v{vT1}, v{vT1}, v{vT2}
        v_lshlrev_b32 v{vT1}, 4, v{vT1}
        s_cmp_ge_u32 s{sT}, 2
        s_cbranch_scc1 L_A
        """)
        return c

    def role_setup(self, role):
        RB = 3584 if role == "H" else 3072
        c = ops(f"s_load_dwordx2 s[{W}:{W+1}], s[0:1], {32 if role == 'H' else 8}")
        c += ops(srd(W, 512 * RB))
        if role == "H":
            c += ops(f"""
            s_add_u32 s{sC}, s{sC}, 4
            s_mul_i32 s{sB}, s{sJ}, 448
            s_bitcmp1_b32 s{sJ}, 0
            s_cselect_b32 s{sH0}, 192, 0
            s_cselect_b32 s{sHL}, 64, 256
            s_cselect_b32 s{sHH}, 0, 384
            s_add_u32 s{sH0}, s{sH0}, s{sB}
            s_add_u32 s{sHL}, s{sHL}, s{sB}
            s_add_u32 s{sHH}, s{sHH}, s{sB}
            """)
        else:
            c += ops(f"s_lshl_b32 s{sHL}, s{sJ}, 7\ns_add_u32 s{sH0}, s{sHL}, 1024")
        c += ops(f"""
        s_and_b32 s{sC}, s{sC}, {self.cfg["rm"]}
        s_mul_i32 s{sA}, s{sW}, {16*RB}
        s_add_u32 s{sB}, s{sA}, s{sH0}
        v_mul_u32_u24 v{vU0}, {RB}, v{vT0}
        v_add3_u32 v{vWD}, v{vU0}, v{vT1}, s{sB}
        """)
        ls = 128 if role == "H" else 1024
        for x in range(1, 4):
            c.append(op(f"v_add_u32 v{vWD+x}, {(x>>1)*ls + (x&1)*(8*RB-1024)}, v{vWD}"))
        return c

    def next_chunk(self, role, first=False, x=True):
        RB = 3584 if role == "H" else 3072
        c = [] if first else ops(f"s_add_u32 s{sC}, s{sC}, 1\ns_and_b32 s{sC}, s{sC}, 7")
        if x:
            c += ops(f"s_lshl_b32 s{sXO}, s{sC}, 7")
        return c + ops(f"s_mul_i32 s{sWO}, s{sC}, {64*RB}")

    def dma(self, v, sr, so, tag, imm=0):
        return vm(f"buffer_load_dwordx4 v{v}, {r(sr,4,'s')}, s{so} offen{f' offset:{imm}' if imm else ''} lds", tag)

    def chunk1(self, role, i):
        base, tag = (i % 4) * SLOT, f"c{i}"
        g = []
        for L in range(2):
            m = [op(f"s_add_u32 m0, s{sLB}, {base+4096+2048*L}")]
            g.append((m + self.next_chunk(role, i == 0) if L == 0 else m) + [self.dma(vWD + 2 * L, W, sWO, tag)])
            g.append([self.dma(vWD + 2 * L + 1, W, sWO, tag, 1024)])
        g.append([op(f"s_add_u32 m0, s{sLB}, {base}"), self.dma(vXD, X, sXO, tag)])
        g += [[self.dma(vXD + p, X, sXO, tag, 1024 * p)] for p in range(1, 4)]
        return g

    def chunk2(self, role, d):
        base, tag = d * SLOT, f"c{8+d}"
        g = []
        for e in range(2):
            g.append([op(f"s_add_u32 m0, s{sLB}, {base+2048*e}")] + self.next_chunk(role, x=False) + [self.dma(vWE, W, sWO, tag)])
            g.append([self.dma(vWE + 1, W, sWO, tag, 1024)])
            if role == "H":
                g.append([op(f"s_add_u32 m0, s{sLB}, {base+4096+1024*e}"), self.dma(vWE + 2, W, sWO, tag)])
        return g

    def gate_load(self):
        rm = self.cfg["rm"]
        c = ops(f"""
        {srd(GT, 1024)}
        s_and_b32 s{sGI}, s{sJ}, {7 & ~rm}
        s_add_u32 s{sA}, s{sRB}, s{sJ}
        s_and_b32 s{sA}, s{sA}, {rm}
        s_add_u32 s{sA}, s{sA}, s{sGI}
        s_lshl_b32 s{sA}, s{sA}, 7
        v_lshrrev_b32 v{vU0}, 5, v{vL}
        v_lshlrev_b32 v{vU0}, 4, v{vU0}
        """)
        return c + [vm(f"buffer_load_dwordx4 {r(GF+4*ks)}, v{vU0}, {r(GT,4,'s')}, s{sA} offen offset:{32*ks}", "gf")
                    for ks in range(4)]

    def late_setup(self, role):
        RB = 3584 if role == "H" else 3072
        c = ops(f"""
        {srd(WS, 256 << 20)}
        {srd(W2, 1792*1024)}
        {srd(WO, 512*1024)}
        {srd(OUT, 2 << 20)}
        {srd(DBG, 256)}
        s_mov_b32 s{sNL}, {NLOG2E if role == 'H' else LOG2E:#x}
        s_mul_i32 s{sA}, s{sW}, {16*RB}
        s_add_u32 s{sB}, s{sA}, s{sHL}
        v_mul_u32_u24 v{vU0}, {RB}, v{vT0}
        v_add3_u32 v{vWE}, v{vU0}, v{vT1}, s{sB}
        v_add_u32 v{vWE+1}, {8*RB-1024}, v{vWE}
        """)
        if role == "H":
            c += ops(f"""
            v_lshrrev_b32 v{vU0}, 2, v{vL}
            v_mul_u32_u24 v{vU0}, {RB}, v{vU0}
            v_and_b32 v{vU1}, 3, v{vL}
            v_lshlrev_b32 v{vU1}, 4, v{vU1}
            s_add_u32 s{sB}, s{sA}, s{sHH}
            v_add3_u32 v{vWE+2}, v{vU0}, v{vU1}, s{sB}
            s_lshl_b32 s{sH0}, s{sH0}, 5
            s_add_u32 s{sH1}, s{sH0}, 4096
            s_lshl_b32 s{sHL}, s{sHL}, 5
            s_lshl_b32 s{sHH}, s{sHH}, 5
            """)
        c += ops(f"s_mul_i32 s{sB}, s{sW}, {28*1024}\ns_lshl_b32 s{sPT}, s{sW}, 13")
        for q in range(4):
            c += ops(f"""
            s_add_u32 s{sA}, s{sT}, {q}
            s_and_b32 s{sA}, s{sA}, 3
            s_lshl_b32 s{EQ+q}, s{sA}, 12
            s_add_u32 s{EQ+q}, s{EQ+q}, s{sB}
            s_cmp_ge_u32 s{sA}, 2
            s_cselect_b32 s{sTM}, {12*1024}, 0
            s_add_u32 s{EQ+q}, s{EQ+q}, s{sTM}
            s_mul_i32 s{LQ+q}, s{sA}, 3072
            s_add_u32 s{LQ+q}, s{LQ+q}, s{sB}
            s_add_u32 s{LQ+q}, s{LQ+q}, 8192
            s_lshl_b32 s{OQ+q}, s{sA}, 11
            s_add_u32 s{OQ+q}, s{OQ+q}, s{sPT}
            """)
        c += ops(f"""
        s_lshl2_add_u32 s{sT}, s{sE}, s{sT}
        s_mul_i32 s{sHV}, s{sT}, {2*112*1024}
        s_lshl_b32 s{sOA}, s{sT}, 16
        s_add_u32 s{sPQ}, s{sOA}, {WS_PQ}
        s_add_u32 s{sOA}, s{sOA}, s{sLB}
        s_lshl_b32 s{sA}, s{sTN}, 7
        s_add_u32 s{sOA}, s{sOA}, s{sA}
        s_add_u32 s{sOB}, s{sOA}, 32768
        s_lshl_b32 s{sGA}, s{sT}, 11
        s_add_u32 s{sGA}, s{sGA}, {WS_G}
        s_lshl_b32 s{sF1}, s{sT}, 9
        s_add_u32 s{sF1}, s{sF1}, {WS_F1}
        s_lshl_b32 s{sF3}, s{sE}, 11
        s_lshl_b32 s{sB}, s{sW}, 9
        s_add_u32 s{sF3}, s{sF3}, s{sB}
        s_add_u32 s{sF3}, s{sF3}, {WS_F3}
        s_lshl_b32 s{sB}, s{sW}, 1
        s_lshl_b32 s{mE}, 3, s{sB}
        s_mov_b32 s{mE+1}, s{mE}
        s_lshl_b32 s{mL}, s{mE}, 8
        s_mov_b32 s{mL+1}, s{mL}
        s_mov_b32 s{mA}, 0xff0000
        s_mov_b32 s{mA+1}, 0xff0000
        s_or_b64 s[{mLA}:{mLA+1}], s[{mL}:{mL+1}], s[{mA}:{mA+1}]
        v_lshlrev_b32 v{vL16}, 4, v{vL}
        v_lshl_add_u32 v{vU0}, v{vT0}, 10, v{vT1}
        v_add_u32 v{vPD}, s{sA}, v{vU0}
        v_add_u32 v{vPD+1}, {8192-1024}, v{vPD}
        v_and_b32 v{vU0}, 31, v{vL}
        v_lshrrev_b32 v{vU1}, 5, v{vL}
        v_bfe_u32 v{vU2}, v{vL}, 1, 3
        v_xor_b32 v{vU2}, v{vU1}, v{vU2}
        v_lshlrev_b32 v{vU2}, 4, v{vU2}
        v_lshl_add_u32 v{vU2}, v{vU0}, 7, v{vU2}
        """)
        for ks in range(4):
            c += ops(f"""
            v_xor_b32 v{vU3}, {32*ks}, v{vU2}
            v_add_u32 v{vXA+ks}, s{sLB}, v{vU3}
            v_add_u32 v{vXA+4+ks}, {2*SLOT}, v{vXA+ks}
            """)
        c += ops(f"""
        v_bfe_u32 v{vU0}, v{vL}, 2, 2
        v_bfe_u32 v{vU2}, v{vL}, 4, 1
        v_lshlrev_b32 v{vU2}, 1, v{vU2}
        v_bfe_u32 v{vU3}, v{vL}, 1, 1
        v_or_b32 v{vU2}, v{vU2}, v{vU3}
        v_bfe_u32 v{vU3}, v{vL}, 3, 1
        v_lshl_or_b32 v{vU2}, v{vU3}, 2, v{vU2}
        v_and_b32 v{vU3}, 1, v{vL}
        v_lshlrev_b32 v{vU3}, 3, v{vU3}
        v_lshl_or_b32 v{vU2}, v{vU2}, 4, v{vU3}
        v_lshl_add_u32 v{vU2}, v{vU0}, 7, v{vU2}
        v_lshl_add_u32 v{vWA}, v{vU1}, 10, v{vU2}
        v_xor_b32 v{vWA+1}, 64, v{vWA}
        v_add_u32 v{vWA+2}, {2*SLOT}, v{vWA}
        v_add_u32 v{vWA+3}, {2*SLOT}, v{vWA+1}
        v_lshl_add_u32 v{vU3}, v{vU1}, 9, v{vU2}
        v_add_u32 v{vPA}, s{sLB}, v{vU3}
        v_xor_b32 v{vPA+1}, 64, v{vPA}
        v_add_u32 v{vPA+2}, {2*SLOT}, v{vPA}
        v_add_u32 v{vPA+3}, {2*SLOT}, v{vPA+1}
        v_add_u32 v{vPA+4}, {4*SLOT}, v{vPA}
        v_add_u32 v{vPA+5}, {4*SLOT}, v{vPA+1}
        s_lshl2_add_u32 s{sA}, s{sRB}, s{sW}
        s_lshl_b32 s{sB}, s{sA}, 8
        s_lshl2_add_u32 s{sB}, s{sJ}, s{sB}
        s_add_u32 s{sB}, s{sB}, {WS_F1 + (0 if role == 'H' else 64)}
        v_mov_b32 v{vFL}, s{sB}
        """)
        if role == "H":
            c += ops(f"""
            v_lshl_add_u32 v{vU3}, v{vU1}, 3, v{vU0}
            v_lshlrev_b32 v{vU3}, 6, v{vU3}
            v_bfe_u32 v{vU2}, v{vL}, 4, 1
            v_lshl_add_u32 v{vU3}, v{vU2}, 5, v{vU3}
            v_and_b32 v{vU2}, 3, v{vL}
            v_lshl_add_u32 v{vHA}, v{vU2}, 3, v{vU3}
            v_add_u32 v{vHA+1}, {2*SLOT}, v{vHA}
            s_mul_i32 s{sA}, s{sA}, {112*1024}
            v_add_u32 v{vST}, s{sA}, v{vL16}
            s_or_b32 s{sA}, s2, s{sW}
            s_cmp_lg_u32 s{sA}, 0
            s_cbranch_scc1 L_np
            s_or_b32 s{sA}, s4, 1
            v_mov_b32 v{vU0}, s{sA}
            v_mov_b32 v{vU1}, 0
            buffer_store_dword v{vU0}, v{vU1}, {r(DBG,4,'s')}, 0 offen sc1
            """) + [label("L_np")]
        else:
            c += ops(f"""
            s_lshl_b32 s{sB}, s{sA}, 15
            s_lshl_b32 s{sTM}, s{sJ}, 12
            s_add_u32 s{sB}, s{sB}, s{sTM}
            s_add_u32 s{sB}, s{sB}, {WS_PQ}
            v_add_u32 v{vST}, s{sB}, v{vL16}
            s_lshl_b32 s{sG}, s{sA}, 10
            s_lshr_b32 s{sTM}, s{sJ}, 2
            s_lshl_b32 s{sTM}, s{sTM}, 9
            s_add_u32 s{sG}, s{sG}, s{sTM}
            s_and_b32 s{sTM}, s{sJ}, 3
            s_lshl2_add_u32 s{sG}, s{sTM}, s{sG}
            s_add_u32 s{sG}, s{sG}, {WS_G}
            s_mov_b32 s{mSEL}, 0xffff
            s_mov_b32 s{mSEL+1}, 0xffff
            s_lshr_b32 s{sA}, s{sW}, 1
            s_lshl_b32 s{sA}, s{sA}, 15
            s_and_b32 s{sB}, s{sW}, 1
            s_lshl_b32 s{sB}, s{sB}, 11
            s_add_u32 s{sA}, s{sA}, s{sB}
            s_add_u32 s{sA}, s{sA}, {2*SLOT+4096}
            v_add_u32 v{vHA}, s{sA}, v{vL16}
            s_add_u32 s{sA}, s{sLB}, {2*SLOT+4096}
            v_add_u32 v{vHA+1}, s{sA}, v{vL16}
            s_lshl4_add_u32 s{sKP}, s{sJ}, s{sRB}
            s_lshl_b32 s{sKP}, s{sKP}, 13
            s_lshl_b32 s{sB}, s{sW}, 11
            s_add_u32 s{sKP}, s{sKP}, s{sB}
            s_add_u32 s{sKP}, s{sKP}, {WS_KVP}
            s_lshl2_add_u32 s{sB}, s{sJ}, s{sW}
            s_lshl_b32 s{sB}, s{sB}, 8
            s_lshl2_add_u32 s{sB}, s{sRB}, s{sB}
            s_add_u32 s{sB}, s{sB}, {WS_F2}
            v_mov_b32 v{vF2}, s{sB}
            s_lshr_b32 s{sTM}, s{sRB}, 2
            s_lshl2_add_u32 s{sB}, s{sJ}, s{sTM}
            s_lshl_b32 s{sRP}, s{sB}, 8
            s_add_u32 s{sRP}, s{sRP}, {WS_F2}
            s_lshl_b32 s{sRK}, s{sJ}, 17
            s_lshl_b32 s{sTM}, s{sTM}, 11
            s_add_u32 s{sRK}, s{sRK}, s{sTM}
            s_and_b32 s{sTM}, s{sRB}, 3
            s_lshl_b32 s{sTM}, s{sTM}, 8
            s_add_u32 s{sRK}, s{sRK}, s{sTM}
            s_add_u32 s{sRK}, s{sRK}, {WS_KVP}
            s_lshl_b32 s{sRT}, s{sB}, 10
            s_add_u32 s{sRT}, s{sRT}, s{sTM}
            s_add_u32 s{sRT}, s{sRT}, {WS_KVT}
            s_lshl_b32 s{sR3}, s{sJ}, 8
            s_lshl2_add_u32 s{sR3}, s{sRB}, s{sR3}
            s_add_u32 s{sR3}, s{sR3}, {WS_F3}
            """)
            c += [op(f"v_mov_b32 v{vONE+i}, 0x3f803f80") for i in range(4)]
        return c

    def addr2(self):
        return ops(f"""
        v_add_u32 v{vHV}, s{sHV}, v{vL16}
        v_add_u32 v{vHV+1}, {112*1024}, v{vHV}
        v_add_u32 v{vPQ}, s{sPQ}, v{vL16}
        v_add_u32 v{vPQ+1}, 32768, v{vPQ}
        v_add_u32 v{vKV}, {WS_KVT}, v{vL16}
        v_lshrrev_b32 v{vU0}, 5, v{vL}
        v_and_b32 v{vF1}, 31, v{vL}
        v_lshlrev_b32 v{vF1}, 2, v{vF1}
        v_lshl_add_u32 v{vF1}, v{vU0}, 8, v{vF1}
        v_bfe_u32 v{vU0}, v{vL}, 4, 1
        v_and_b32 v{vF3}, 15, v{vL}
        v_lshlrev_b32 v{vF3}, 2, v{vF3}
        v_lshl_add_u32 v{vF3}, v{vU0}, 8, v{vF3}
        """)

    def addr3(self):
        a, b, d = 224, vU2, vU3
        return ops(f"""
        v_lshrrev_b32 v{a}, 5, v{vL}
        v_and_b32 v{b}, 7, v{vL}
        v_xor_b32 v{a}, v{a}, v{b}
        v_lshlrev_b32 v{a}, 4, v{a}
        v_and_b32 v{d}, 31, v{vL}
        v_lshl_add_u32 v{a}, v{d}, 8, v{a}
        v_add_u32 v{vRW}, s{sLB}, v{a}
        v_xor_b32 v{vRW+1}, 32, v{vRW}
        v_xor_b32 v{vRW+2}, 64, v{vRW}
        v_xor_b32 v{vRW+3}, 96, v{vRW}
        v_lshrrev_b32 v{d}, 3, v{vL}
        v_lshlrev_b32 v{a}, 1, v{b}
        v_xor_b32 v{a}, v{a}, v{d}
        v_lshlrev_b32 v{a}, 4, v{a}
        v_lshl_add_u32 v{a}, v{d}, 8, v{a}
        s_lshl_b32 s{sA}, s{sW}, 11
        v_add_u32 v{vRR}, s{sA}, v{a}
        v_xor_b32 v{vRR+1}, 16, v{vRR}
        v_lshlrev_b32 v{a}, 10, v{d}
        v_lshl_add_u32 v{vOUT}, v{b}, 4, v{a}
        s_lshl_b32 s{sA}, s{sW}, 5
        v_lshl_add_u32 v{vBP}, v{d}, 2, s{sA}
        """)

    def spin(self, load, check, ok):
        lab, lp = self.lab("spin"), self.lab("spinl")
        self.tail += [label(lab), op(f"s_mov_b32 s{sSP}, {SPIN}"), label(lp), op(load), op("s_waitcnt vmcnt(0)")]
        self.tail += ops(check) + ops(f"""
        s_cbranch_scc0 {ok}
        s_sub_u32 s{sSP}, s{sSP}, 1
        s_cmp_lg_u32 s{sSP}, 0
        s_cbranch_scc1 {lp}
        s_branch {ok}
        """)
        return lab

    def nonce_jobs(self):
        def get(s):
            ok = self.lab("ok")
            chk = f"v_readfirstlane_b32 s{sN}, v{vN}\ns_cmp_eq_u32 s{sN}, 0"
            lab = self.spin(f"buffer_load_dword v{vN}, off, {r(DBG,4,'s')}, 0 sc1", chk, ok)
            return [wvm("nonce")] + ops(chk) + [op(f"s_cbranch_scc1 {lab}"), label(ok), op(f"v_mov_b32 v{vNV}, s{sN}")]
        return [Job(lambda s: [vm(f"buffer_load_dword v{vN}, off, {r(DBG,4,'s')}, 0 sc1", "nonce")], after("addr2", "valu")),
                Job(get, None, arrived("nonce"), "nonce")]

    def poll(self, name, va, so, mask, soft, evs, hard=None, st=None, vN=vN):
        ld = f"buffer_load_dword v{vN}, v{va}, {r(WS,4,'s')}, s{so} offen sc1"
        m = f"s[{mask}:{mask+1}]" if mask else "-1"
        chk = f"v_cmp_ne_u32 vcc, s{sN}, v{vN}\ns_nop 4\ns_and_b64 s[{sTM}:{sTM+1}], vcc, {m}"

        def check(s):
            ok = self.lab("ok")
            lab = self.spin(ld, chk, ok)
            for e in evs:
                s.mark(e)
            return [wvm("p" + name)] + ops(chk) + [op(f"s_cbranch_scc1 {lab}"), label(ok)] + (self.stamp(st, 2) if st else [])
        return [Job(lambda s: [vm(ld, "p" + name)], hard, soft), Job(check, None, arrived("p" + name))]

    def flag(self, name, tag, ev, va, so="0", imm=0, st=None, q="valu"):
        o = f" offset:{imm}" if imm else ""
        return Job(lambda s: [wvm(tag), vm(f"buffer_store_dword v{vNV}, v{va}, {r(WS,4,'s')}, {so} offen{o} sc1", "f" + name)]
                   + (self.stamp(st, 2) if st else []), after(ev, q), arrived(tag), "flag" + name)

    @staticmethod
    def kbase(n):
        return (EQ + (n >> 2), n & 3) if n < 16 else (LQ + (n - 16) // 3, (n - 16) % 3)

    def pair_jobs(self, s, kind, n):
        name = f"{kind}{n}"
        base, i = self.kbase(n) if kind == "P" else (OQ + (n >> 1), n & 1)
        sr = W2 if kind == "P" else WO

        def issue(s):
            sl, q, prev = s.take(s.stage)
            s.held["_" + name] = (sl, q)
            s.m0q = "pair"
            return ([wlg(prev)] if prev else []) + ops(f"s_add_u32 m0, s{sLB}, {sl*SLOT+2048*q}\n"
                                                       f"s_lshl4_add_u32 s{sPT}, s{base}, {16384*i}") + [self.dma(vPD, sr, sPT, name)]

        def issue2(s):
            s.held[name] = s.held.pop("_" + name)
            s.m0q = None
            return [self.dma(vPD + 1, sr, sPT, name, 1024)]

        def drain(s):
            sl, q = s.held.pop(name)
            s.stage.append(((sl, q, "d" + name), None))
            return [wvm(name)] + [ds(f"ds_read_b64_tr_b16 {r(8*n+4*nb+2*t,2,'a')}, v{vPA+2*(sl>>1)+nb} "
                                     f"offset:{SLOT*(sl&1)+2048*q+1024*t}", "d" + name) for t in range(2) for nb in range(2)]
        free = None if kind == "P" and n < 16 else (f"n{min(63, 34+2*(n-16))}" if kind == "P" else f"H{n+1}")

        def dhard(s):
            if name not in s.held:
                return "pair" if "pgo" in s.at else "chunk"
            return None if free is None or free in s.at else "stuck"
        s.q["pair"].append(Job(issue, lambda s: ("chunk" if "pgo" not in s.at else None if s.avail(s.stage) else "drain")))
        s.q["pair"].append(Job(issue2, ev="i" + name))
        s.q["drain"].append(Job(drain, dhard, lambda s: s.t >= s.dv[name] + self.cfg["latP"], "d" + name))

    def silu8(self, a, t, pk=False):
        if pk:
            c = [op(f"v_pk_mul_f32 {r(t+i,2)}, {r(a+i,2)}, {r(sNL,2,'s')} op_sel_hi:[1,0]") for i in range(0, 8, 2)]
        else:
            c = [op(f"v_mul_f32 v{t+i}, s{sNL}, v{a+i}") for i in range(8)]
        c += [op(f"v_exp_f32 v{t+i}, v{t+i}") for i in range(8)]
        if pk:
            c += [op(f"v_pk_add_f32 {r(t+i,2)}, {r(t+i,2)}, 1.0 op_sel_hi:[1,0]") for i in range(0, 8, 2)]
        else:
            c += [op(f"v_add_f32 v{t+i}, 1.0, v{t+i}") for i in range(8)]
        c += [op(f"v_rcp_f32 v{t+i}, v{t+i}") for i in range(8)]
        if pk:
            c += [op(f"v_pk_mul_f32 {r(a+i,2)}, {r(a+i,2)}, {r(t+i,2)}") for i in range(0, 8, 2)]
        else:
            c += [op(f"v_mul_f32 v{a+i}, v{a+i}, v{t+i}") for i in range(8)]
        return c + cvt4(a)

    def phi8(self, a, t):
        c = [op(f"v_mul_f32 v{t+i}, s{sNL}, v{a+i}") for i in range(8)]
        c += [op(f"v_exp_f32_e64 v{t+i}, v{t+i} clamp") for i in range(8)]
        c += [op(f"v_max_f32 v{a+i}, {EPS:#x}, v{a+i}") for i in range(8)]
        c += [op(f"v_add_f32 v{a+i}, v{a+i}, v{t+i}") for i in range(8)]
        return c + cvt4(a)

    def valu_H(self):
        q = []
        for u in range(14):
            b, hf = divmod(u, 2)
            a = 16 * b + 8 * hf
            so, imm = [(sH0, u), (sH1, u - 4), (sHL, u - 8), (sHH, u - 12)][u >> 2]
            ev = f"m31.{b}" if b < 4 else f"m63.{b-4}"
            st = vm(f"buffer_store_dwordx4 {r(a)}, v{vST}, {r(WS,4,'s')}, s{so} offen offset:{1024*imm} sc1", "hE" if u < 8 else "hL")
            q += single(self.silu8(a, TMP + 8 * (u & 1), self.cfg["pk"] & (1 if u < 8 else 2)) + [st], f"st{u}", later(ev, 56), after(ev))
        return q

    def gate_mfma(self):
        rm, c, join = self.cfg["rm"], [], self.lab("gj")
        leaves = list(range(0, 8, rm + 1))
        for i in leaves:
            nxt = self.lab("gl")
            last = i == leaves[-1]
            if not last:
                c += ops(f"s_cmp_lg_u32 s{sGI}, {i}\ns_cbranch_scc1 {nxt}")
            c += [op(f"{MF} {r(96,16)}, {r(GF+4*ks)}, {r(XA+16*i+4*ks,4,'a')}, {r(96,16) if ks else 0}") for ks in range(4)]
            if not last:
                c += [op(f"s_branch {join}"), label(nxt)]
        return c + [label(join)]

    def valu_A(self):
        q = single([op(f"v_and_b32 v{vU0}, 0x1f0, v{vL16}"),
                    vm(f"buffer_store_dword v96, v{vU0}, {r(WS,4,'s')}, s{sG} offen sc1", "g")], "stG", later("gate", 56), after("gate"))
        for b in range(2):
            for hf in range(2):
                q += single(self.phi8(16 * b + 8 * hf, 120 + 16 * hf) + cvt4(32 + 16 * b + 8 * hf))
            m = []
            for hf in range(2):
                pk, vv = r(16 * b + 8 * hf), r(32 + 16 * b + 8 * hf)
                m.append(op(f"{MF} {r(D1[b],16)}, {pk}, {vv}, {r(D1[b],16) if hf else 0}"))
                m.append(op(f"{MF} {r(D2[b],16)}, {pk}, {r(vONE)}, {r(D2[b],16) if hf else 0}"))
            q += single(m, f"kv{b}")
        for b in range(2):
            c = []
            for i in range(16):
                f, t = (D2[b] + i, D1[b] + i) if i < 8 else (D1[b] + i, D2[b] + i)
                c.append(op(f"v_cndmask_b32 v{D1[b]+i}, v{f}, v{t}, s[{mSEL}:{mSEL+1}]"))
            c += [ds(f"ds_write_b128 v{vHA}, {r(D1[b]+4*x)} offset:{(2*b+(x>>1))*WREG + 1024*(x&1)}", "kw") for x in range(4)]
            q += single(c, f"sel{b}", later(f"kv{b}", 56))
        q.append(Job(lambda s: [wlg("kw"), op("s_barrier")], None, lambda s: s.t >= s.dl["kw"], "xbar"))
        q += single([ds(f"ds_read_b128 {r(160+4*x)}, v{vHA+1} offset:{(x>>2)*SLOT + 1024*(x&3)}", f"kr{x}") for x in range(8)])
        q.append(Job(lambda s: [wlg("kr7")], None, lambda s: s.t >= s.dl["kr7"], "xrd"))
        c = [op(f"v_add_f32 v{160+i}, v{160+i}, v{168+i}") for i in range(8)]
        c += [op(f"v_add_f32 v{176+i}, v{176+i}, v{184+i}") for i in range(8)]
        c += [op(f"v_add_f32 v{160+i}, v{160+i}, v{176+i}") for i in range(8)]
        c += [vm(f"buffer_store_dwordx4 {r(160+4*hf)}, v{vL16}, {r(WS,4,'s')}, s{sKP} offen offset:{1024*hf} sc1", "kvp") for hf in range(2)]
        q += single(c, "stK")
        for u in range(4):
            ev = f"m63.{u>>1}"
            st = vm(f"buffer_store_dwordx4 {r(64+8*u)}, v{vST}, {r(WS,4,'s')}, 0 offen offset:{1024*u} sc1", "pq")
            q += single(self.phi8(64 + 8 * u, TMP + 8 * (u & 1)) + [st], f"stQ{u}", later(ev, 56), after(ev))
        return q

    def reducer_jobs(self):
        def loads(s):
            c = []
            for p in range(16):
                c.append(vm(f"buffer_load_dwordx2 {r(160+2*p,2)}, v{vRK}, {r(WS,4,'s')}, s{sRK} offen sc1", "kp"))
                c.append(op(f"s_add_u32 s{sRK}, s{sRK}, 8192"))
            return c

        def total(s):
            c = [wvm("kp")]
            for st in (16, 8, 4, 2):
                c += [op(f"v_add_f32 v{160+i}, v{160+i}, v{160+i+st}") for i in range(st)]
            return c + [op("v_cvt_pk_bf16_f32 v160, v160, v161"),
                        vm(f"buffer_store_dword v160, v{vRT}, {r(WS,4,'s')}, s{sRT} offen sc1", "kvt")]
        return self.poll("F", vRP, sRP, None, later("flagF", self.cfg["dF"]), ["F"], st=6) + \
            [Job(loads), Job(total, None, arrived("kp"), "kvt")]

    def nblk(self, role, n):
        return 4 if n < 32 else (3 if role == "H" else 2)

    def reads(self, role, n):
        buf, tag, out = WF[n % 3], f"r{n}", []
        if n < 32:
            i, ks = divmod(n, 4)
            s = i % 4
            out.append(ds(f"ds_read_b128 {r(XA+4*n,4,'a')}, v{vXA+4*(s>>1)+ks} offset:{SLOT*(s&1)}", tag))
            o = [4096 + 2048 * (b >> 1) for b in range(4)]
        else:
            s, e, ks = (n - 32) >> 3, (n >> 2) & 1, n & 3
            o = [2048 * e] * 2
        base = SLOT * (s & 1) + WREG * ks
        for b in range(self.nblk(role, n)):
            for t in range(2):
                if n >= 32 and b == 2:
                    a, off = vHA + (s >> 1), base + 4096 + 1024 * e + 256 * t
                else:
                    a, off = vWA + 2 * (s >> 1) + (b & 1), base + o[b] + 512 * t
                out.append(ds(f"ds_read_b64_tr_b16 {r(buf+4*b+2*t,2)}, v{a} offset:{off}", tag))
        return out

    def stage1(self, role):
        cfg = self.cfg
        s = Stream(cfg)
        s.emit(self.role_setup(role) + [op("s_waitcnt lgkmcnt(0)")])
        if cfg.get("stamps"):
            s.emit(ops(f"v_writelane_b32 v{vS0}, s4, 0\nv_writelane_b32 v{vS0+1}, s6, 0"))
        for i in range(cfg["pre"]):
            s.emit(self.chunk1(role, i))
        if role == "A":
            s.emit(self.gate_load())
        s.emit(self.late_setup(role))
        for n in range(28):
            self.pair_jobs(s, "P", n)
        for n in range(8):
            self.pair_jobs(s, "O", n)
        pm = str(cfg["pm" + role]).zfill(12)
        for i in range(cfg["pre"], 12):
            g = self.chunk1(role, i) if i < 8 else self.chunk2(role, i - 8)
            js = [Job(locked(x, None if k + 1 == len(g) or "m0" in g[k + 1][0].text else "chunk")) for k, x in enumerate(g)]
            if i >= 4:
                js[0].hard = after(f"b{i-4}")
            js[-1].ev = f"ic{i}"
            s.q["chunk"] += js
            for _ in range(int(pm[i])):
                a, b = s.q["pair"].pop(0), s.q["pair"].pop(0)
                a.hard = lambda s: None if s.avail(s.stage) else "drain"
                s.q["chunk"] += [Job(relock(a.make), a.hard), b]
            if i + 1 == cfg["pstart"]:
                s.q["chunk"].append(Job(lambda s: [], ev="pgo"))
        s.stage = [((4, q, None), None) for q in range(4)]
        if role == "H":
            s.stage += [((x, 3, None), f"b{4+x}") for x in range(4)]
            s.stage += [((x, q, None), f"b{8+x}") for x in range(4) for q in range(3)]
            s.ring = [(x, None) for x in range(12, 16)] + [(x, "S1") for x in range(6, 12)] + [(x, f"st{8+x}") for x in range(6)]
        else:
            s.stage += [((x, q, None), f"b{4+x}") for x in range(2) for q in (2, 3)]
            s.stage += [((x, q, None), "xrd") for x in (2, 3) for q in (2, 3)]
            s.stage += [((x, q, None), f"b{8+x}") for x in range(4) for q in range(2)]
            s.ring = [(x, "S1") for x in range(4, 12)] + [(x, f"stQ{x}") for x in range(4)]
        s.q["valu"] = single(self.addr2(), "addr2", None, after("ic7", "chunk")) + (self.valu_H() if role == "H" else self.valu_A())
        s.q["ctl"] = self.nonce_jobs()
        if role == "H":
            j = {"fE": self.flag("E", "hE", "st7", vFL, st=1), "fL": self.flag("L", "hL", "st13", vFL, imm=32, st=3)}
            j["pE"], j["cE"] = self.poll("E", vF1, sF1, mE, later("flagE", cfg["dE"]), ["E"], st=2)
            j["pL"], j["cL"] = self.poll("L", vF1, sF1, mLA, later("flagL", cfg["dL"]), ["L", "A"], st=4)
            j["pK"], j["cK"] = self.poll("K", vF3, sF3, None, later("flagL", cfg["dK"]), ["K"], after("st13", "valu"), 5, vST)
            s.q["ctl"] += [j[x] for x in cfg["ctlH"].split()]
            self.stage2_jobs(s)
        else:
            s.q["ctl"] += [self.flag("F", "kvp", "stK", vF2, st=1)]
        s.emit([wvm("c0"), op("s_barrier")] + self.stamp(1) + self.stamp(1, 3) + self.reads(role, 0) + self.reads(role, 1))
        self.log.append(f"{role} start {s.t}")
        for n in range(64):
            nb = self.nblk(role, n)
            if n == 32:
                s.emit(self.stamp(2))
                self.log.append(f"{role} phase2 {s.t}")
                if role == "A":
                    s.emit([wvm("gf")] + self.gate_mfma())
                    extra = 128 * (8 // (cfg["rm"] + 1) - 1)
                    s.t -= extra
                    s.mf -= extra
                    s.mark("gate")
            rd = self.reads(role, n + 2) if n + 2 < 64 else []
            bar = n >> 2 if n < 32 and n % 4 == 2 else (8 + ((n - 32) >> 3) if n >= 32 and n % 8 == 6 else None)
            s.emit(wlg(f"r{n}"))
            for b in range(nb):
                acc = 16 * b + (0 if n < 32 else 64)
                w_, x_ = r(WF[n % 3] + 4 * b), r(XA + 4 * (n & 31), 4, "a")
                if role == "A" and n < 32:
                    w_, x_ = x_, w_
                s.emit(op(f"{MF} {r(acc,16)}, {w_}, {x_}, {r(acc,16) if n & 31 else 0}"))
                s.mark(f"m{n}.{b}")
                if b == 0 and bar is not None:
                    if bar < 11:
                        if bar + 1 >= cfg["pre"]:
                            s.require(f"ic{bar+1}", "chunk")
                        s.until(s.dv[f"c{bar+1}"])
                    s.emit([wlg(f"r{n+1}")] + ([wvm(f"c{bar+1}")] if bar < 11 else []) + [op("s_barrier")] + self.stamp(bar + 2, 3))
                    s.mark(f"b{bar}")
                    self.log.append(f"b{bar} {s.t}")
                s.emit(rd[(b * len(rd) + nb - 1) // nb:((b + 1) * len(rd) + nb - 1) // nb])
                s.gap(0 if n < 32 else cfg["rate" if role == "H" else "rateA"])
            s.mark(f"n{n}")
            if n == cfg["pstart"] > 12:
                s.mark("pgo")
        s.mark("S1")
        s.emit(self.stamp(3) + self.stamp(7, 2))
        self.log.append(f"{role} S1 {s.t} pf {s.pf}")
        return s

    def order(self):
        k = self.cfg["nplain"]
        o = [("H", n) for n in range(k)]
        h = k
        for n in range(8):
            o.append(("o", n))
            if h < 28:
                o.append(("H", h))
                h += 1
            o.append(("w", n))
        return o + [("H", n) for n in range(h, 28)]

    def stage2_jobs(self, s):
        def slot(ev):
            return lambda s: ("ctl" if ev not in s.at else None if s.avail(s.ring) else "valu")

        def two(name, va, so, imm, ev):
            def mk(i):
                def f(s):
                    if i == 0:
                        s.held[name] = RING + 8 * s.take(s.ring)
                    return [vm(f"buffer_load_dwordx4 {r(s.held[name]+4*i)}, v{va+i}, {r(WS,4,'s')}, s{so} offen offset:{imm} sc1", name)]
                return f
            return [Job(mk(0), slot(ev)), Job(mk(1), ev="i" + name)]

        def gload(s):
            x = s.held["G"] = RING + 8 * s.take(s.ring)
            c = [wvm("G")]
            for ii in range(2):
                b = x + 4 * ii
                c += ops(f"""
                v_add_f32 v{b}, v{b}, v{b+1}
                v_add_f32 v{b+2}, v{b+2}, v{b+3}
                v_add_f32 v{b}, v{b}, v{b+2}
                v_mov_b32 v{b+1}, v{b}
                v_permlane32_swap_b32 v{b}, v{b+1}
                v_add_f32 v{b}, v{b}, v{b+1}
                v_min_f32 v{b}, 0x41f00000, v{b}
                v_mul_f32 v{b}, {LOG2E:#x}, v{b}
                v_exp_f32 v{vES+ii}, v{b}
                v_add_f32 v{b}, 1.0, v{vES+ii}
                v_rcp_f32 v{vOM+ii}, v{b}
                """)
            s.q["valu"] += single(c, "gdone", arrived("G"))
            s.ring.append(((x - RING) // 8, "gdone"))
            return [vm(f"buffer_load_dwordx4 {r(x+4*i)}, v{vL16}, {r(WS,4,'s')}, s{sGA} offen offset:{1024*i} sc1", "G") for i in range(2)]
        first = True
        for kind, n in self.order():
            if kind == "H":
                so, i = self.kbase(n)
                s.q["hq"] += two(f"h{n}", vHV, so, 1024 * i, "E" if n < 16 else "L")
            elif kind == "o":
                so, i = OQ + (n >> 1), n & 1
                if first:
                    s.q["hq"].append(Job(gload, slot("A"), None, "iG"))
                    first = False
                s.q["hq"] += two(f"q{n}", vPQ, so, 1024 * i, "A")
                kv = vm(f"buffer_load_dwordx4 {r(KVA+4*n,4,'a')}, v{vKV}, {r(WS,4,'s')}, s{so} offen offset:{1024*i} sc1", f"k{n}")
                s.q["hq"].append(Job((lambda kv: lambda s: [kv])(kv), lambda s: "ctl" if "K" not in s.at else None if "S1" in s.at else "stuck", None, f"ik{n}"))

    def proc(self, n, ii):
        base = OB + 16 * ii
        num, den = (base, base + 8) if n % 2 == 0 else (base + 8, base)
        t = vU0 + ii
        c = ops(f"v_add_f32 v{t}, {EPS:#x}, v{den}\nv_rcp_f32 v{t}, v{t}\nv_mul_f32 v{t}, v{t}, v{vES+ii}")
        c += [op(f"v_mul_f32 v{num+x}, v{num+x}, v{t}") for x in range(8)]
        return c + cvt4(num)

    def stage2(self, s, name):
        cfg = self.cfg
        s.Q = cfg["Q2"]
        rate = cfg["rate2"]
        a3 = False
        for kind, n in self.order():
            if not a3 and not s.q["drain"]:
                s.q["valu"] += single([wlg("dO7")] + self.addr3(), "addr3")
                a3 = True
            if kind == "H":
                s.require(f"ih{n}", "hq")
                s.require(f"dP{n}", "drain")
                s.until(s.dv[f"h{n}"])
                if n in (0, 16):
                    s.emit(self.stamp(4 + n // 16))
                    self.log.append(f"{name} H{n} {s.t}")
                x0 = s.held.pop(f"h{n}")
                s.emit([wvm(f"h{n}"), wlg(f"dP{n}")])
                for x in range(4):
                    ii, nb = x >> 1, x & 1
                    acc = r(32 * ii + 16 * nb, 16)
                    s.emit(op(f"{MF} {acc}, {r(8*n+4*nb,4,'a')}, {r(x0+4*ii)}, {acc if n else 0}"))
                    if x == 3:
                        s.ring.append(((x0 - RING) // 8, None))
                        s.mark(f"H{n}")
                    s.gap(rate)
            elif kind == "o":
                s.require(f"ik{n}", "hq")
                s.require("gdone", "valu")
                if name == "H":
                    s.require("st13", "valu")
                else:
                    s.require("stQ3", "valu")
                s.until(s.dv[f"k{n}"])
                x0 = s.held.pop(f"q{n}")
                s.emit(wvm(f"k{n}"))
                for ii in range(2):
                    s.emit(op(f"{MF} {r(OB+16*ii,16)}, {r(KVA+4*n,4,'a')}, {r(x0+4*ii)}, 0"))
                    s.mark(f"o{n}.{ii}")
                    s.q["valu"][ii * 15:ii * 15] = single(self.proc(n, ii), f"p{n}.{ii}", later(f"o{n}.{ii}", cfg.get("dO", 56)))
                    if ii:
                        s.ring.append(((x0 - RING) // 8, None))
                    s.gap(rate)
            else:
                s.require(f"dO{n}", "drain")
                s.emit(wlg(f"dO{n}"))
                for x in range(4):
                    ii, nb = x >> 1, x & 1
                    s.require(f"p{n}.{ii}", "valu")
                    acc = r(32 * ii + 16 * nb, 16)
                    s.emit(op(f"{MF} {acc}, {r(8*n+4*nb,4,'a')}, {r(OB+16*ii+8*(n&1))}, {acc}"))
                    s.gap(rate)
        if not a3:
            s.q["valu"] += single([wlg("dO7")] + self.addr3(), "addr3")
        s.require("addr3", "valu")
        for k, q in s.q.items():
            assert not q, (name, k, len(q))
        s.emit(self.stamp(6))
        self.log.append(f"{name} last {s.t} pf {s.pf}")
        c = [ds(f"ds_bpermute_b32 v{vES+ii}, v{vBP}, v{vOM+ii}", "bp") for ii in range(2)]
        for ii in range(2):
            for nb in range(2):
                for j in range(4):
                    c.append(ds(f"ds_write_b128 v{vRW+j}, {r(32*ii+16*nb+4*j)} offset:{SLOT*ii+128*nb}", "rw"))
        c += [lg0(), op("s_barrier")]
        for ii in range(2):
            for p in range(4):
                for z in range(2):
                    c.append(ds(f"ds_read_b128 {r(32*ii+8*p+4*z)}, v{vRR+z} offset:{WREG*p+SLOT*ii}", f"rr{ii}.{p}"))
        for ii in range(2):
            b = 32 * ii
            c.append(wlg(f"rr{ii}.1"))
            c += [op(f"v_pk_add_f32 {r(b+x,2)}, {r(b+x,2)}, {r(b+8+x,2)}") for x in range(0, 8, 2)]
            c.append(wlg(f"rr{ii}.3"))
            c += [op(f"v_pk_add_f32 {r(b+16+x,2)}, {r(b+16+x,2)}, {r(b+24+x,2)}") for x in range(0, 8, 2)]
            c += [op(f"v_pk_add_f32 {r(b+x,2)}, {r(b+x,2)}, {r(b+16+x,2)}") for x in range(0, 8, 2)]
            c += [op(f"v_mul_f32 v{b+x}, v{b+x}, v{vES+ii}") for x in range(8)]
            c += cvt4(b)
            c.append(vm(f"buffer_store_dwordx4 {r(b)}, v{vOUT}, {r(OUT,4,'s')}, s{sOB if ii else sOA} offen", "o"))
        if cfg.get("stamps"):
            c += [vm0()] + self.stamp({1: 7, 2: 9, 3: 14}[cfg["stamps"]], 0) + ops(f"""
            s_cmp_lg_u32 s{sW}, {cfg.get('stamp_wave', 0)}
            s_cbranch_scc1 L_end
            s_lshl_b32 s{sA}, s2, 8
            s_add_u32 s{sA}, s{sA}, {WS_STAMP}
            v_lshlrev_b32 v0, 3, v{vL}
            s_mov_b64 exec, 0xffffffff
            buffer_store_dwordx2 {r(vS0,2)}, v0, {r(WS,4,'s')}, s{sA} offen
            """)
        s.emit(c + [op("s_endpgm")])
        return s.items

    def a_ctl(self, s, red):
        cfg = self.cfg
        j = {"fA": self.flag("A", "pq", "stQ3", vFL, st=3)}
        if red:
            s.emit(ops(f"""
            v_and_b32 v{vRP}, 15, v{vL}
            v_lshlrev_b32 v{vRP}, 2, v{vRP}
            v_lshrrev_b32 v{vRK}, 2, v{vL}
            v_lshlrev_b32 v{vRK}, 4, v{vRK}
            v_bfe_u32 v{vRT}, v{vL}, 1, 1
            v_lshl_add_u32 v{vRK}, v{vRT}, 10, v{vRK}
            v_and_b32 v{vRT}, 1, v{vL}
            v_lshl_add_u32 v{vRK}, v{vRT}, 3, v{vRK}
            v_lshlrev_b32 v{vRT}, 2, v{vL}
            v_and_b32 v{vR3}, 7, v{vL}
            v_lshlrev_b32 v{vR3}, 11, v{vR3}
            """))
            j["pF"], j["cF"], j["ld"], j["sum"] = self.reducer_jobs()
            j["f3"] = self.flag("3", "kvt", "kvt", vR3, f"s{sR3}", st=8)
        s.ring += [(x, "kvt" if red else "stK") for x in range(12, 16)]
        j["pE"], j["cE"] = self.poll("E", vF1, sF1, mE, later("S1", cfg["tE"]), ["E"], st=2)
        j["pL"], j["cL"] = self.poll("L", vF1, sF1, mLA, later("S1", cfg["tL"]), ["L", "A"], st=4)
        j["pK"], j["cK"] = self.poll("K", vF3, sF3, None, later("S1", cfg["tK"]), ["K"], after("stQ3", "valu"), 5, vST)
        s.q["ctl"] += [j[x] for x in cfg["ctlA0" if red else "ctlA1"].split()]
        self.stage2_jobs(s)

    def build(self):
        c = self.head()
        c += self.stage2(self.stage1("H"), "H")
        c += [label("L_A"), reset()]
        s = self.stage1("A")
        s.require("xbar", "valu")
        s.emit([op(f"s_cmp_lg_u32 s{sW}, 0"), op("s_cbranch_scc1 L_A1"), save("A")])
        c += s.items
        s.items = []
        s1 = copy.copy(s)
        for k in ("dv", "dl", "at", "held"):
            setattr(s1, k, dict(getattr(s, k)))
        s1.q = {k: list(v) for k, v in s.q.items()}
        s1.stage, s1.ring, s1.items = list(s.stage), list(s.ring), []
        self.a_ctl(s, True)
        c += self.stage2(s, "A0")
        self.a_ctl(s1, False)
        c += [label("L_A1"), restore("A"), op("s_nop 11")] + self.stage2(s1, "A1")
        c += self.tail + [label("L_end"), op("s_endpgm")]
        lines, added = pad(resolve(flat(c)))
        hdr = open(f"cdna_kernels/{NAME}.s.ref").read().split("; Override launch")[0]
        t = hdr + "; @launch grid=(256,1,1) block=(256,1,1) lds=163840\n"
        t += f'.amdgcn_target "amdgcn-amd-amdhsa--gfx950"\n.text\n.globl {K}\n.p2align 8\n.type {K},@function\n{K}:\n'
        t += text(lines)
        t += '.section .rodata,"a"\n.p2align 6\n' + descriptor(K, 512, 256, 102)
        return t, added, len(lines)


def main():
    cfg = {}
    for a in sys.argv[2:]:
        k, _, v = a.partition("=")
        cfg[k] = (int(v) if v.lstrip("-").isdigit() else v.replace(",", " ")) if v else 1
    g = Gen(cfg)
    s, added, n = g.build()
    open(sys.argv[1], "w").write(s)
    print(sys.argv[1], "lines", n, "nop states", added, "|", "; ".join(g.log))


if __name__ == "__main__":
    main()
```

```python
import copy
import sys
from prog import op, vm, ds, wvm, wlg, vm0, lg0, label, reset, save, restore, ops, flat, resolve, pad, text, TRANS
from asmlib import descriptor

NAME = "gated_mix__linear_attn_block__dense_activation_silu__prompt"
K = NAME + "_kernel"
MF = "v_mfma_f32_32x32x16_bf16"

WS_H, WS_PQ, WS_KVP, WS_KVT = 0, 8 << 20, 14 << 20, 11 << 20
WS_G = WS_KVT + 65536
WS_F1 = 12 << 20
WS_F2 = WS_F1 + 16384
WS_F3 = WS_F1 + 32768
WS_STAMP = 128 << 20
SLOT, WREG = 32768, 8192

X, W, W2, WO, WS, OUT, GT, DBG = 8, 12, 16, 20, 24, 28, 32, 36
sW, sRB, sJ, sC, sXO, sWO, sLB, sN = 40, 41, 42, 43, 44, 45, 46, 47
sPT, sT, sTN, sA, sB, sSP, sNL, sE = 48, 49, 50, 51, 52, 53, 54, 55
sR, sH0, sH1, sHL, sTM = 56, 57, 58, 59, 60
sHH, sG = 62, 63
EQ, LQ, OQ = 64, 68, 72
mE, mL, mA, mLA, mSEL, mEA = 76, 78, 80, 82, 84, 100
sHV, sPQ, sGA, sF1, sF3, sKP, sRP, sRK, sRT, sR3, sOA, sOB, sGI = range(86, 99)

WF = (112, 128, 144)
TMP, GF, OB = 192, 192, 192
D1, D2 = (160, 176), (192, 96)
vWE, vF2, vXA, vWA, vHA, vXD, vWD = 208, 210, 211, 219, 223, 225, 229
vRP, vRK, vRT, vR3 = 211, 212, 213, 214
vHV, vPQ, vKV, vNV, vF1, vF3 = 225, 227, 229, 230, 231, 232
vPD, vPA = 233, 235
vRW, vRR, vOUT, vBP = 233, 237, 239, 240
vL, vL16, vN, vST, vFL, vS0 = 241, 242, 243, 244, 245, 246
vT0, vT1, vT2 = 248, 249, 250
vONE, vES, vOM = 248, 248, 250
vU0, vU1, vU2, vU3 = 252, 253, 254, 255
RING, XA, KVA = 64, 128, 224

LOG2E, NLOG2E, EPS = 0x3FB8AA3B, 0xBFB8AA3B, 0x358637BD
SPIN = 200000

DEF = dict(rm=3, pre=2, Q=60, Qc=60, Q2=60, B=72, lat=1000, lats=1200, rate=40, rateA=40, rate2=24, dE=500, dL=500,
           dF=1500, tE=0, tL=3000, tK=3000, dK=500, nplain=20, pk=0, pstart=12, pmH=0, pmA=0, latP=0, pf="", gH="", gA="", gp=0, pg=0, pmax=99, att=0, hack=0, pfirst=1, cH="cE:st13", cA="sum:stQ3",
           dA=0, tA=1500, ctlH="fE pE cE fL pLA pK cLA cK", ctlA="ld sum fA f3 pE cE pLA pK cLA cK")


def r(b, n=4, k="v"):
    return f"{k}[{b}:{b+n-1}]"


def srd(d, nbytes):
    return f"s_mov_b32 s{d+2}, {nbytes:#x}\ns_mov_b32 s{d+3}, 0x20000"


def cvt4(a):
    return [op(f"v_cvt_pk_bf16_f32 v{a+i}, v{a+2*i}, v{a+2*i+1}") for i in range(4)]


class Job:
    def __init__(self, make, hard=None, soft=None, ev=None):
        self.make, self.hard, self.soft, self.ev = make, hard, soft, ev


def after(ev, q="stuck"):
    return lambda s: None if ev in s.at else q


class Stream:
    def __init__(self, cfg):
        self.cfg = cfg
        self.items = []
        self.t = self.mf = self.pf = self.lastv = 0
        self.dv, self.dl, self.at = {}, {}, {}
        self.q = {k: [] for k in ("ctl", "chunk", "hq", "pair", "drain", "valu")}
        self.stage, self.ring, self.held = [], [], {}
        self.Q = cfg["Q"]
        self.m0q = None
        self.lastp = self.fly = 0

    def mark(self, ev):
        self.at.setdefault(ev, self.t)

    def emit(self, x):
        for it in flat([x]):
            self.items.append(it)
            k, s = it.kind, it.text
            if k == "op":
                if s.startswith("v_mfma"):
                    self.t = max(self.t, self.mf)
                    self.mf = self.t + 32
                    self.t += 8
                elif s.startswith("s_nop"):
                    self.t += int(s.split()[1]) + 1
                else:
                    self.t += 8 if s.split()[0].replace("_e64", "") in TRANS else 4
            elif k == "vm":
                self.t = max(self.t + 4, self.pf - self.cfg["B"])
                self.pf = max(self.pf, self.t) + (72 if "x4" in s else 40 if "x2" in s else 30)
                self.lastv = max(self.lastv, self.pf + self.cfg["lats" if "store" in s else "lat"])
                self.dv[it.tag] = self.lastv
            elif k == "ds":
                self.t += 4
                self.dl[it.tag] = self.t + 100
            elif k == "wvm":
                tg = it.tag
                self.t = max([self.t] + ([self.lastv] if tg == "*" else [self.dv[x] for x in (tg if isinstance(tg, list) else [tg])]))
            elif k == "wlg":
                tg = it.tag
                self.t = max([self.t] + (list(self.dl.values()) if tg == "*" else [self.dl[x] for x in (tg if isinstance(tg, list) else [tg])]))

    def run(self, qn):
        j = self.q[qn].pop(0)
        self.emit(j.make(self))
        if j.ev:
            self.mark(j.ev)

    def ok(self, qn):
        q = self.q[qn]
        if not q:
            return False
        j = q[0]
        if qn in ("chunk", "pair") and self.m0q not in (None, qn):
            return False
        return (j.hard is None or j.hard(self) is None) and (j.soft is None or j.soft(self))

    def step(self, lim, valu=True, idle=0):
        back = 0 if self.pf - self.cfg["B"] < idle else self.pf - self.t
        for qn, cap, cond in (("ctl", 2, True), ("chunk", 1, back < self.cfg["Qc"]), ("hq", 1, back < self.Q),
                              ("pair", 1, back < self.Q), ("drain", 1, True)):
            key = "ld" if qn in ("chunk", "hq", "pair") else qn
            if cond and lim.get(key, 0) < cap and self.ok(qn):
                lim[key] = lim.get(key, 0) + 1
                self.run(qn)
                return True
        if valu and self.ok("valu"):
            t0 = self.t
            self.run("valu")
            lim["v"] = lim.get("v", 0) + self.t - t0
            return True
        return False

    def gap(self, rate):
        lim = {}
        while self.step(lim, self.t < self.mf - 4 or lim.get("v", 0) < rate):
            pass

    def force(self, qn):
        assert qn != "stuck" and self.q[qn], f"schedule stuck on {qn}"
        j = self.q[qn][0]
        b = j.hard(self) if j.hard else None
        if qn in ("chunk", "pair") and self.m0q not in (None, qn):
            b = self.m0q
        if b is None:
            self.run(qn)
        else:
            self.force(b)

    def require(self, ev, qn):
        while ev not in self.at:
            if not self.step({}) and not self.step({}, idle=1 << 30) and not self.unblock(1 << 30):
                self.force(qn)

    def unblock(self, t):
        q = self.q["drain"]
        if self.fly < self.cfg["pmax"] or not self.q["pair"] or not q or q[0].hard(self) is not None or self.dv[q[0].ev[1:]] > t:
            return False
        self.run("drain")
        return True

    def until(self, t):
        while self.t < t and (self.step({}) or self.step({}, idle=t) or self.unblock(t)):
            pass

    def take(self, pool):
        for i, (x, ev) in enumerate(pool):
            if ev is None or ev in self.at:
                return pool.pop(i)[0]
        return None

    def avail(self, pool):
        return any(ev is None or ev in self.at for _, ev in pool)


def single(items, ev=None, soft=None, hard=None):
    items = flat(items)
    out = [Job((lambda it: lambda s: [it])(it)) for it in items]
    out[0].soft, out[0].hard = soft, hard
    out[-1].ev = ev
    return out


def locked(x, q):
    def mk(s):
        s.m0q = q
        return x
    return mk


def relock(make):
    def mk(s):
        x = make(s)
        s.m0q = "chunk"
        return x
    return mk


def later(ev, d):
    return lambda s: ev in s.at and s.t >= s.at[ev] + d


def arrived(tag):
    return lambda s: s.t >= s.dv[tag]


class Gen:
    def __init__(self, cfg):
        self.cfg = dict(DEF, **cfg)
        self.tail = []
        self.uid = 0
        self.log = []

    def lab(self, stem):
        self.uid += 1
        return f"L_{stem}{self.uid}"

    def stamp(self, k, kind=1):
        if self.cfg.get("stamps") != kind and not (self.cfg.get("stamps") and kind == 0):
            return []
        return [op("s_memrealtime s[4:5]"), op("s_memtime s[6:7]"), lg0(),
                op(f"v_writelane_b32 v{vS0}, s4, {k}"), op(f"v_writelane_b32 v{vS0+1}, s6, {k}")]

    def head(self):
        c = ops(f"""
        s_cmp_ge_u32 s2, 256
        s_cbranch_scc1 L_end
        s_load_dwordx2 s[{X}:{X+1}], s[0:1], 0
        s_load_dwordx2 s[{W2}:{W2+1}], s[0:1], 40
        s_load_dwordx2 s[{WO}:{WO+1}], s[0:1], 16
        s_load_dwordx2 s[{WS}:{WS+1}], s[0:1], 72
        s_load_dwordx2 s[{OUT}:{OUT+1}], s[0:1], 56
        s_load_dwordx2 s[{GT}:{GT+1}], s[0:1], 48
        s_load_dwordx2 s[{DBG}:{DBG+1}], s[0:1], 64
        s_memrealtime s[4:5]
        """)
        if self.cfg.get("stamps"):
            c += ops(f"s_memtime s[6:7]\nv_mov_b32 v{vS0}, 0\nv_mov_b32 v{vS0+1}, 0")
        c += ops(f"""
        v_lshrrev_b32 v{vT0}, 6, v0
        v_and_b32 v{vL}, 63, v0
        s_and_b32 s{sE}, s2, 7
        v_readfirstlane_b32 s{sW}, v{vT0}
        s_lshr_b32 s{sR}, s2, 3
        s_and_b32 s{sA}, s{sE}, 1
        s_lshl_b32 s{sA}, s{sA}, 3
        s_and_b32 s{sTN}, s{sR}, 7
        s_add_u32 s{sRB}, s{sTN}, s{sA}
        s_lshr_b32 s{sT}, s{sR}, 3
        s_and_b32 s{sJ}, s{sE}, 6
        s_and_b32 s{sA}, s{sT}, 1
        s_add_u32 s{sJ}, s{sJ}, s{sA}
        s_lshl_b32 s{sLB}, s{sW}, 13
        s_add_u32 s{sC}, s{sRB}, s{sJ}
        {srd(X, 2 << 20)}
        v_lshrrev_b32 v{vT0}, 3, v{vL}
        v_lshrrev_b32 v{vT1}, 4, v{vL}
        v_and_b32 v{vT2}, 7, v{vL}
        v_xor_b32 v{vU0}, v{vT1}, v{vT2}
        s_lshl_b32 s{sA}, s{sRB}, 17
        s_lshl_b32 s{sTM}, s{sW}, 15
        s_add_u32 s{sA}, s{sA}, s{sTM}
        v_lshlrev_b32 v{vU1}, 10, v{vT0}
        v_lshl_add_u32 v{vU0}, v{vU0}, 4, v{vU1}
        v_add_u32 v{vXD}, s{sA}, v{vU0}
        v_xor_b32 v{vU0}, 64, v{vXD}
        v_add_u32 v{vXD+1}, {8192-1024}, v{vU0}
        v_add_u32 v{vXD+2}, {2*(8192-1024)}, v{vXD}
        v_add_u32 v{vXD+3}, {3*(8192-1024)}, v{vU0}
        v_and_b32 v{vT1}, 1, v{vT1}
        v_lshlrev_b32 v{vT1}, 2, v{vT1}
        v_xor_b32 v{vT1}, v{vT1}, v{vT2}
        v_lshlrev_b32 v{vT1}, 4, v{vT1}
        s_cmp_ge_u32 s{sT}, 2
        s_cbranch_scc1 L_A
        """)
        return c

    def role_setup(self, role):
        RB = 3584 if role == "H" else 3072
        c = ops(f"s_load_dwordx2 s[{W}:{W+1}], s[0:1], {32 if role == 'H' else 8}")
        c += ops(srd(W, 512 * RB))
        if role == "H":
            c += ops(f"""
            s_add_u32 s{sC}, s{sC}, 4
            s_mul_i32 s{sB}, s{sJ}, 448
            s_bitcmp1_b32 s{sJ}, 0
            s_cselect_b32 s{sH0}, 192, 0
            s_cselect_b32 s{sHL}, 64, 256
            s_cselect_b32 s{sHH}, 0, 384
            s_add_u32 s{sH0}, s{sH0}, s{sB}
            s_add_u32 s{sHL}, s{sHL}, s{sB}
            s_add_u32 s{sHH}, s{sHH}, s{sB}
            """)
        else:
            c += ops(f"s_lshl_b32 s{sHL}, s{sJ}, 7\ns_add_u32 s{sH0}, s{sHL}, 1024")
        c += ops(f"""
        s_and_b32 s{sC}, s{sC}, {self.cfg["rm"]}
        s_mul_i32 s{sA}, s{sW}, {16*RB}
        s_add_u32 s{sB}, s{sA}, s{sH0}
        v_mul_u32_u24 v{vU0}, {RB}, v{vT0}
        v_add3_u32 v{vWD}, v{vU0}, v{vT1}, s{sB}
        """)
        ls = 128 if role == "H" else 1024
        for x in range(1, 4):
            c.append(op(f"v_add_u32 v{vWD+x}, {(x>>1)*ls + (x&1)*(8*RB-1024)}, v{vWD}"))
        return c

    def next_chunk(self, role, first=False, x=True):
        RB = 3584 if role == "H" else 3072
        c = [] if first else ops(f"s_add_u32 s{sC}, s{sC}, 1\ns_and_b32 s{sC}, s{sC}, 7")
        if x:
            c += ops(f"s_lshl_b32 s{sXO}, s{sC}, 7")
        return c + ops(f"s_mul_i32 s{sWO}, s{sC}, {64*RB}")

    def dma(self, v, sr, so, tag, imm=0):
        return vm(f"buffer_load_dwordx4 v{v}, {r(sr,4,'s')}, s{so} offen{f' offset:{imm}' if imm else ''} lds", tag)

    def chunk1(self, role, i):
        base, tag = (i % 4) * SLOT, f"c{i}"
        g = []
        for L in range(2):
            m = [op(f"s_add_u32 m0, s{sLB}, {base+4096+2048*L}")]
            g.append((m + self.next_chunk(role, i == 0) if L == 0 else m) + [self.dma(vWD + 2 * L, W, sWO, tag)])
            g.append([self.dma(vWD + 2 * L + 1, W, sWO, tag, 1024)])
        g.append([op(f"s_add_u32 m0, s{sLB}, {base}"), self.dma(vXD, X, sXO, tag)])
        g += [[self.dma(vXD + p, X, sXO, tag, 1024 * p)] for p in range(1, 4)]
        return g

    def chunk2(self, role, d):
        base, tag = d * SLOT, f"c{8+d}"
        g = []
        for e in range(2):
            g.append([op(f"s_add_u32 m0, s{sLB}, {base+2048*e}")] + self.next_chunk(role, x=False) + [self.dma(vWE, W, sWO, tag)])
            g.append([self.dma(vWE + 1, W, sWO, tag, 1024)])
            if role == "H":
                g.append([op(f"s_add_u32 m0, s{sLB}, {base+4096+1024*e}"), self.dma(vWE + 2, W, sWO, tag)])
        return g

    def gate_load(self):
        rm = self.cfg["rm"]
        c = ops(f"""
        {srd(GT, 1024)}
        s_and_b32 s{sGI}, s{sJ}, {7 & ~rm}
        s_add_u32 s{sA}, s{sRB}, s{sJ}
        s_and_b32 s{sA}, s{sA}, {rm}
        s_add_u32 s{sA}, s{sA}, s{sGI}
        s_lshl_b32 s{sA}, s{sA}, 7
        v_lshrrev_b32 v{vU0}, 5, v{vL}
        v_lshlrev_b32 v{vU0}, 4, v{vU0}
        """)
        return c + [vm(f"buffer_load_dwordx4 {r(GF+4*ks)}, v{vU0}, {r(GT,4,'s')}, s{sA} offen offset:{32*ks}", "gf")
                    for ks in range(4)]

    def late_setup(self, role):
        RB = 3584 if role == "H" else 3072
        c = ops(f"""
        {srd(WS, 256 << 20)}
        {srd(W2, 1792*1024)}
        {srd(WO, 512*1024)}
        {srd(OUT, 2 << 20)}
        {srd(DBG, 256)}
        s_mov_b32 s{sNL}, {NLOG2E if role == 'H' else LOG2E:#x}
        s_mul_i32 s{sA}, s{sW}, {16*RB}
        s_add_u32 s{sB}, s{sA}, s{sHL}
        v_mul_u32_u24 v{vU0}, {RB}, v{vT0}
        v_add3_u32 v{vWE}, v{vU0}, v{vT1}, s{sB}
        v_add_u32 v{vWE+1}, {8*RB-1024}, v{vWE}
        """)
        if role == "H":
            c += ops(f"""
            v_lshrrev_b32 v{vU0}, 2, v{vL}
            v_mul_u32_u24 v{vU0}, {RB}, v{vU0}
            v_and_b32 v{vU1}, 3, v{vL}
            v_lshlrev_b32 v{vU1}, 4, v{vU1}
            s_add_u32 s{sB}, s{sA}, s{sHH}
            v_add3_u32 v{vWE+2}, v{vU0}, v{vU1}, s{sB}
            s_lshl_b32 s{sH0}, s{sH0}, 5
            s_add_u32 s{sH1}, s{sH0}, 4096
            s_lshl_b32 s{sHL}, s{sHL}, 5
            s_lshl_b32 s{sHH}, s{sHH}, 5
            """)
        c += ops(f"s_mul_i32 s{sB}, s{sW}, {28*1024}\ns_lshl_b32 s{sPT}, s{sW}, 13")
        for q in range(4):
            c += ops(f"""
            s_add_u32 s{sA}, s{sT}, {q}
            s_and_b32 s{sA}, s{sA}, 3
            s_lshl_b32 s{EQ+q}, s{sA}, 12
            s_add_u32 s{EQ+q}, s{EQ+q}, s{sB}
            s_cmp_ge_u32 s{sA}, 2
            s_cselect_b32 s{sTM}, {12*1024}, 0
            s_add_u32 s{EQ+q}, s{EQ+q}, s{sTM}
            s_mul_i32 s{LQ+q}, s{sA}, 3072
            s_add_u32 s{LQ+q}, s{LQ+q}, s{sB}
            s_add_u32 s{LQ+q}, s{LQ+q}, 8192
            s_lshl_b32 s{OQ+q}, s{sA}, 11
            s_add_u32 s{OQ+q}, s{OQ+q}, s{sPT}
            """)
        c += ops(f"""
        s_lshl2_add_u32 s{sT}, s{sE}, s{sT}
        s_mul_i32 s{sHV}, s{sT}, {2*112*1024}
        s_lshl_b32 s{sOA}, s{sT}, 16
        s_add_u32 s{sPQ}, s{sOA}, {WS_PQ}
        s_add_u32 s{sOA}, s{sOA}, s{sLB}
        s_lshl_b32 s{sA}, s{sTN}, 7
        s_add_u32 s{sOA}, s{sOA}, s{sA}
        s_add_u32 s{sOB}, s{sOA}, 32768
        s_lshl_b32 s{sGA}, s{sT}, 11
        s_add_u32 s{sGA}, s{sGA}, {WS_G}
        s_lshl_b32 s{sF1}, s{sT}, 9
        s_add_u32 s{sF1}, s{sF1}, {WS_F1}
        s_lshl_b32 s{sF3}, s{sE}, 11
        s_lshl_b32 s{sB}, s{sW}, 9
        s_add_u32 s{sF3}, s{sF3}, s{sB}
        s_add_u32 s{sF3}, s{sF3}, {WS_F3}
        s_lshl_b32 s{sB}, s{sW}, 1
        s_lshl_b32 s{mE}, 3, s{sB}
        s_mov_b32 s{mE+1}, s{mE}
        s_lshl_b32 s{mL}, s{mE}, 8
        s_mov_b32 s{mL+1}, s{mL}
        s_mov_b32 s{mA}, 0xff0000
        s_mov_b32 s{mA+1}, 0xff0000
        s_or_b64 s[{mLA}:{mLA+1}], s[{mL}:{mL+1}], s[{mA}:{mA+1}]
        s_or_b64 s[{mEA}:{mEA+1}], s[{mE}:{mE+1}], s[{mA}:{mA+1}]
        v_lshlrev_b32 v{vL16}, 4, v{vL}
        v_lshl_add_u32 v{vU0}, v{vT0}, 10, v{vT1}
        v_add_u32 v{vPD}, s{sA}, v{vU0}
        v_add_u32 v{vPD+1}, {8192-1024}, v{vPD}
        v_and_b32 v{vU0}, 31, v{vL}
        v_lshrrev_b32 v{vU1}, 5, v{vL}
        v_bfe_u32 v{vU2}, v{vL}, 1, 3
        v_xor_b32 v{vU2}, v{vU1}, v{vU2}
        v_lshlrev_b32 v{vU2}, 4, v{vU2}
        v_lshl_add_u32 v{vU2}, v{vU0}, 7, v{vU2}
        """)
        for ks in range(4):
            c += ops(f"""
            v_xor_b32 v{vU3}, {32*ks}, v{vU2}
            v_add_u32 v{vXA+ks}, s{sLB}, v{vU3}
            v_add_u32 v{vXA+4+ks}, {2*SLOT}, v{vXA+ks}
            """)
        c += ops(f"""
        v_bfe_u32 v{vU0}, v{vL}, 2, 2
        v_bfe_u32 v{vU2}, v{vL}, 4, 1
        v_lshlrev_b32 v{vU2}, 1, v{vU2}
        v_bfe_u32 v{vU3}, v{vL}, 1, 1
        v_or_b32 v{vU2}, v{vU2}, v{vU3}
        v_bfe_u32 v{vU3}, v{vL}, 3, 1
        v_lshl_or_b32 v{vU2}, v{vU3}, 2, v{vU2}
        v_and_b32 v{vU3}, 1, v{vL}
        v_lshlrev_b32 v{vU3}, 3, v{vU3}
        v_lshl_or_b32 v{vU2}, v{vU2}, 4, v{vU3}
        v_lshl_add_u32 v{vU2}, v{vU0}, 7, v{vU2}
        v_lshl_add_u32 v{vWA}, v{vU1}, 10, v{vU2}
        v_xor_b32 v{vWA+1}, 64, v{vWA}
        v_add_u32 v{vWA+2}, {2*SLOT}, v{vWA}
        v_add_u32 v{vWA+3}, {2*SLOT}, v{vWA+1}
        v_lshl_add_u32 v{vU3}, v{vU1}, 9, v{vU2}
        v_add_u32 v{vPA}, s{sLB}, v{vU3}
        v_xor_b32 v{vPA+1}, 64, v{vPA}
        v_add_u32 v{vPA+2}, {2*SLOT}, v{vPA}
        v_add_u32 v{vPA+3}, {2*SLOT}, v{vPA+1}
        v_add_u32 v{vPA+4}, {4*SLOT}, v{vPA}
        v_add_u32 v{vPA+5}, {4*SLOT}, v{vPA+1}
        s_lshl2_add_u32 s{sA}, s{sRB}, s{sW}
        s_lshl_b32 s{sB}, s{sA}, 8
        s_lshl2_add_u32 s{sB}, s{sJ}, s{sB}
        s_add_u32 s{sB}, s{sB}, {WS_F1 + (0 if role == 'H' else 64)}
        v_mov_b32 v{vFL}, s{sB}
        """)
        if role == "H":
            c += ops(f"""
            v_lshl_add_u32 v{vU3}, v{vU1}, 3, v{vU0}
            v_lshlrev_b32 v{vU3}, 6, v{vU3}
            v_bfe_u32 v{vU2}, v{vL}, 4, 1
            v_lshl_add_u32 v{vU3}, v{vU2}, 5, v{vU3}
            v_and_b32 v{vU2}, 3, v{vL}
            v_lshl_add_u32 v{vHA}, v{vU2}, 3, v{vU3}
            v_add_u32 v{vHA+1}, {2*SLOT}, v{vHA}
            s_mul_i32 s{sA}, s{sA}, {112*1024}
            v_add_u32 v{vST}, s{sA}, v{vL16}
            s_or_b32 s{sA}, s2, s{sW}
            s_cmp_lg_u32 s{sA}, 0
            s_cbranch_scc1 L_np
            s_or_b32 s{sA}, s4, 1
            v_mov_b32 v{vU0}, s{sA}
            v_mov_b32 v{vU1}, 0
            buffer_store_dword v{vU0}, v{vU1}, {r(DBG,4,'s')}, 0 offen sc1
            """) + [label("L_np")]
        else:
            c += ops(f"""
            s_lshl_b32 s{sB}, s{sA}, 15
            s_lshl_b32 s{sTM}, s{sJ}, 12
            s_add_u32 s{sB}, s{sB}, s{sTM}
            s_add_u32 s{sB}, s{sB}, {WS_PQ}
            v_add_u32 v{vST}, s{sB}, v{vL16}
            s_lshl_b32 s{sG}, s{sA}, 10
            s_lshr_b32 s{sTM}, s{sJ}, 2
            s_lshl_b32 s{sTM}, s{sTM}, 9
            s_add_u32 s{sG}, s{sG}, s{sTM}
            s_and_b32 s{sTM}, s{sJ}, 3
            s_lshl2_add_u32 s{sG}, s{sTM}, s{sG}
            s_add_u32 s{sG}, s{sG}, {WS_G}
            s_mov_b32 s{mSEL}, 0xffff
            s_mov_b32 s{mSEL+1}, 0xffff
            s_lshr_b32 s{sA}, s{sW}, 1
            s_lshl_b32 s{sA}, s{sA}, 15
            s_and_b32 s{sB}, s{sW}, 1
            s_lshl_b32 s{sB}, s{sB}, 11
            s_add_u32 s{sA}, s{sA}, s{sB}
            s_add_u32 s{sA}, s{sA}, {2*SLOT+4096}
            v_add_u32 v{vHA}, s{sA}, v{vL16}
            s_add_u32 s{sA}, s{sLB}, {2*SLOT+4096}
            v_add_u32 v{vHA+1}, s{sA}, v{vL16}
            s_lshl4_add_u32 s{sKP}, s{sJ}, s{sRB}
            s_lshl2_add_u32 s{sR3}, s{sKP}, s{sW}
            s_lshl_b32 s{sKP}, s{sR3}, 12
            s_add_u32 s{sKP}, s{sKP}, {WS_KVP}
            s_lshl_b32 s{sR3}, s{sR3}, 2
            s_add_u32 s{sR3}, s{sR3}, {WS_F3}
            s_and_b32 s{sTM}, s{sRB}, 3
            s_lshl2_add_u32 s{sTM}, s{sTM}, s{sW}
            s_lshl_b32 s{sTM}, s{sTM}, 6
            s_lshr_b32 s{sA}, s{sRB}, 2
            s_lshl_b32 s{sRK}, s{sJ}, 6
            s_add_u32 s{sRK}, s{sRK}, s{sA}
            s_lshl_b32 s{sRK}, s{sRK}, 12
            s_add_u32 s{sRK}, s{sRK}, s{sTM}
            s_add_u32 s{sRK}, s{sRK}, {WS_KVP}
            s_add_u32 s{sRP}, s{sRK}, {8 << 14}
            s_lshl2_add_u32 s{sRT}, s{sJ}, s{sA}
            s_lshl_b32 s{sRT}, s{sRT}, 10
            s_add_u32 s{sRT}, s{sRT}, s{sTM}
            s_add_u32 s{sRT}, s{sRT}, {WS_KVT}
            """)
            c += [op(f"v_mov_b32 v{vONE+i}, 0x3f803f80") for i in range(4)]
        return c

    def addr2(self):
        return ops(f"""
        v_add_u32 v{vHV}, s{sHV}, v{vL16}
        v_add_u32 v{vHV+1}, {112*1024}, v{vHV}
        v_add_u32 v{vPQ}, s{sPQ}, v{vL16}
        v_add_u32 v{vPQ+1}, 32768, v{vPQ}
        v_add_u32 v{vKV}, {WS_KVT}, v{vL16}
        v_lshrrev_b32 v{vU0}, 5, v{vL}
        v_and_b32 v{vF1}, 31, v{vL}
        v_lshlrev_b32 v{vF1}, 2, v{vF1}
        v_lshl_add_u32 v{vF1}, v{vU0}, 8, v{vF1}
        v_lshlrev_b32 v{vF3}, 3, v{vL}
        """)

    def addr3(self):
        a, b, d = 224, vU2, vU3
        return ops(f"""
        v_lshrrev_b32 v{a}, 5, v{vL}
        v_and_b32 v{b}, 7, v{vL}
        v_xor_b32 v{a}, v{a}, v{b}
        v_lshlrev_b32 v{a}, 4, v{a}
        v_and_b32 v{d}, 31, v{vL}
        v_lshl_add_u32 v{a}, v{d}, 8, v{a}
        v_add_u32 v{vRW}, s{sLB}, v{a}
        v_xor_b32 v{vRW+1}, 32, v{vRW}
        v_xor_b32 v{vRW+2}, 64, v{vRW}
        v_xor_b32 v{vRW+3}, 96, v{vRW}
        v_lshrrev_b32 v{d}, 3, v{vL}
        v_lshlrev_b32 v{a}, 1, v{b}
        v_xor_b32 v{a}, v{a}, v{d}
        v_lshlrev_b32 v{a}, 4, v{a}
        v_lshl_add_u32 v{a}, v{d}, 8, v{a}
        s_lshl_b32 s{sA}, s{sW}, 11
        v_add_u32 v{vRR}, s{sA}, v{a}
        v_xor_b32 v{vRR+1}, 16, v{vRR}
        v_lshlrev_b32 v{a}, 10, v{d}
        v_lshl_add_u32 v{vOUT}, v{b}, 4, v{a}
        s_lshl_b32 s{sA}, s{sW}, 5
        v_lshl_add_u32 v{vBP}, v{d}, 2, s{sA}
        """)

    def spin(self, load, check, ok, duty=None):
        lab, lp = self.lab("spin"), self.lab("spinl")
        self.tail += [label(lab)] + ([op("s_waitcnt vmcnt(0)"), op(duty)] if duty else [])
        self.tail += [op(f"s_mov_b32 s{sSP}, {SPIN}"), label(lp)] + ops(load) + [op("s_waitcnt vmcnt(0)")]
        self.tail += ops(check) + ops(f"""
        s_cbranch_scc0 {ok}
        s_sub_u32 s{sSP}, s{sSP}, 1
        s_cmp_lg_u32 s{sSP}, 0
        s_cbranch_scc1 {lp}
        s_branch {ok}
        """)
        return lab

    def nonce_jobs(self):
        def get(s):
            ok = self.lab("ok")
            chk = f"v_readfirstlane_b32 s{sN}, v{vN}\ns_cmp_eq_u32 s{sN}, 0"
            lab = self.spin(f"buffer_load_dword v{vN}, off, {r(DBG,4,'s')}, 0 sc1", chk, ok)
            return [wvm("nonce")] + ops(chk) + [op(f"s_cbranch_scc1 {lab}"), label(ok), op(f"v_mov_b32 v{vNV}, s{sN}")]
        return [Job(lambda s: [vm(f"buffer_load_dword v{vN}, off, {r(DBG,4,'s')}, 0 sc1", "nonce")], after("addr2", "valu")),
                Job(get, None, arrived("nonce"), "nonce")]

    def duty(self, s):
        for ev, fl in (("st13", "L"), ("stQ3", "A")):
            if ev in s.at and "flag" + fl not in s.at:
                return self.flag_store(vFL, "0", 32 if fl == "L" else 0)
        return None

    def poll(self, name, va, so, mask, soft, evs, hard=None, st=None):
        if mask:
            ld = f"buffer_load_dword v{vN}, v{va}, {r(WS,4,'s')}, s{so} offen sc1"
            chk = f"v_cmp_ne_u32 vcc, s{sN}, v{vN}\ns_nop 4\ns_and_b64 s[{sTM}:{sTM+1}], vcc, s[{mask}:{mask+1}]"
        else:
            ld = f"buffer_load_dwordx2 {r(vU0,2)}, v{va}, {r(WS,4,'s')}, s{so} offen sc1"
            chk = (f"v_cmp_ne_u32 vcc, s{sN}, v{vU0}\nv_cmp_ne_u32 s[{sTM}:{sTM+1}], s{sN}, v{vU0+1}\ns_nop 4\n"
                   f"s_or_b64 s[{sTM}:{sTM+1}], vcc, s[{sTM}:{sTM+1}]")

        def check(s):
            ok = self.lab("ok")
            lab = self.spin(ld, chk, ok, self.duty(s))
            for e in evs:
                s.mark(e)
            return [wvm("p" + name)] + ops(chk) + [op(f"s_cbranch_scc1 {lab}"), label(ok)] + (self.stamp(st, 2) if st else [])
        return [Job(lambda s: [vm(ld, "p" + name)], hard, soft), Job(check, None, arrived("p" + name))]

    @staticmethod
    def flag_store(va, so, imm):
        return f"buffer_store_dword v{vNV}, v{va}, {r(WS,4,'s')}, {so} offen{f' offset:{imm}' if imm else ''} sc1"

    def flag(self, name, tag, ev, va, so="0", imm=0, st=None, q="valu"):
        return Job(lambda s: [wvm(tag), vm(self.flag_store(va, so, imm), "f" + name)]
                   + (self.stamp(st, 2) if st else []), after(ev, q), lambda s: s.t >= s.dv[tag] + self.cfg.get("x" + name, 0), "flag" + name)

    def polls(self, j, role):
        cfg = self.cfg
        base = {"E": ("flagE", "dE"), "A": ("S1", "dA"), "L": ("flagL", "dL"), "K": ("S1", "dK")} if role == "H" else \
            {x: ("S1" if x == "E" else "E", "t" + x) for x in "EALK"}
        for nm, mask, st in (("E", mE, 2), ("A", mA, 6), ("L", mL, 4), ("LA", mLA, 4), ("EA", mEA, 2)):
            ev, d = base["A" if nm == "EA" else nm[0]]
            j["p" + nm], j["c" + nm] = self.poll(nm, vF1, sF1, mask, later(ev, cfg[d]), list(nm), after("addr2", "valu"), st)
        ev, d = base["K"]
        j["pK"], j["cK"] = self.poll("K", vF3, sF3, None, later(ev, cfg[d]), ["K"], after("S1"), 5)
        self.gates(j, cfg["c" + role])
        return [j[x] for x in cfg["ctl" + role].split()]

    @staticmethod
    def kbase(n):
        return (EQ + (n >> 2), n & 3) if n < 16 else (LQ + (n - 16) // 3, (n - 16) % 3)

    def pair_jobs(self, s, kind, n):
        name = f"{kind}{n}"
        base, i = self.kbase(n) if kind == "P" else (OQ + (n >> 1), n & 1)
        sr = W2 if kind == "P" else WO

        def issue(s):
            sl, q, prev = s.take(s.stage)
            s.held["_" + name] = (sl, q)
            s.m0q = "pair"
            s.lastp = s.t
            s.fly += 1
            return ([wlg(prev)] if prev else []) + ops(f"s_add_u32 m0, s{sLB}, {sl*SLOT+2048*q}\n"
                                                       + (f"s_mov_b32 s{sPT}, 0" if self.cfg["hack"] & 1 else f"s_lshl4_add_u32 s{sPT}, s{base}, {16384*i}")) + [self.dma(vPD, sr, sPT, name)]

        def issue2(s):
            s.held[name] = s.held.pop("_" + name)
            s.m0q = None
            return [self.dma(vPD + 1, sr, sPT, name, 1024)]

        def drain(s):
            sl, q = s.held.pop(name)
            s.fly -= 1
            s.stage.append(((sl, q, "d" + name), None))
            return [wvm(name)] + [ds(f"ds_read_b64_tr_b16 {r(8*n+4*nb+2*t,2,'a')}, v{vPA+2*(sl>>1)+nb} "
                                     f"offset:{SLOT*(sl&1)+2048*q+1024*t}", "d" + name) for t in range(2) for nb in range(2)]
        free = None if kind == "P" and n < 16 else (f"n{min(63, 34+2*(n-16))}" if kind == "P" else f"H{n+1}")

        def dhard(s):
            if name not in s.held:
                return "pair" if "pgo" in s.at else "chunk"
            return None if free is None or free in s.at else "stuck"
        s.q["pair"].append(Job(issue, lambda s: ("chunk" if "pgo" not in s.at else None if s.avail(s.stage) else "drain"),
                               lambda s: s.t >= s.lastp + (0 if "S1" in s.at else self.cfg["pg"]) and s.fly < self.cfg["pmax"]))
        s.q["pair"].append(Job(issue2, ev="i" + name))
        s.q["drain"].append(Job(drain, dhard, lambda s: s.t >= s.dv[name] + (0 if "S1" in s.at else self.cfg["latP"]), "d" + name))

    def silu8(self, a, t, pk=False):
        if pk:
            c = [op(f"v_pk_mul_f32 {r(t+i,2)}, {r(a+i,2)}, {r(sNL,2,'s')} op_sel_hi:[1,0]") for i in range(0, 8, 2)]
        else:
            c = [op(f"v_mul_f32 v{t+i}, s{sNL}, v{a+i}") for i in range(8)]
        c += [op(f"v_exp_f32 v{t+i}, v{t+i}") for i in range(8)]
        if pk:
            c += [op(f"v_pk_add_f32 {r(t+i,2)}, {r(t+i,2)}, 1.0 op_sel_hi:[1,0]") for i in range(0, 8, 2)]
        else:
            c += [op(f"v_add_f32 v{t+i}, 1.0, v{t+i}") for i in range(8)]
        c += [op(f"v_rcp_f32 v{t+i}, v{t+i}") for i in range(8)]
        if pk:
            c += [op(f"v_pk_mul_f32 {r(a+i,2)}, {r(a+i,2)}, {r(t+i,2)}") for i in range(0, 8, 2)]
        else:
            c += [op(f"v_mul_f32 v{a+i}, v{a+i}, v{t+i}") for i in range(8)]
        return c + cvt4(a)

    def phi8(self, a, t):
        c = [op(f"v_mul_f32 v{t+i}, s{sNL}, v{a+i}") for i in range(8)]
        c += [op(f"v_exp_f32_e64 v{t+i}, v{t+i} clamp") for i in range(8)]
        c += [op(f"v_max_f32 v{a+i}, {EPS:#x}, v{a+i}") for i in range(8)]
        c += [op(f"v_add_f32 v{a+i}, v{a+i}, v{t+i}") for i in range(8)]
        return c + cvt4(a)

    def valu_H(self):
        q = []
        for u in range(14):
            b, hf = divmod(u, 2)
            a = 16 * b + 8 * hf
            so, imm = [(sH0, u), (sH1, u - 4), (sHL, u - 8), (sHH, u - 12)][u >> 2]
            ev = f"m31.{b}" if b < 4 else f"m63.{b-4}"
            st = vm(f"buffer_store_dwordx4 {r(a)}, v{vST}, {r(WS,4,'s')}, s{so} offen offset:{1024*imm} sc1", "hE" if u < 8 else "hL")
            q += single(self.silu8(a, TMP + 8 * (u & 1), self.cfg["pk"] & (1 if u < 8 else 2)) + [st], f"st{u}", later(ev, 56), after(ev))
        return q

    def gate_mfma(self):
        rm, c, join = self.cfg["rm"], [], self.lab("gj")
        leaves = list(range(0, 8, rm + 1))
        for i in leaves:
            nxt = self.lab("gl")
            last = i == leaves[-1]
            if not last:
                c += ops(f"s_cmp_lg_u32 s{sGI}, {i}\ns_cbranch_scc1 {nxt}")
            c += [op(f"{MF} {r(96,16)}, {r(GF+4*ks)}, {r(XA+16*i+4*ks,4,'a')}, {r(96,16) if ks else 0}") for ks in range(4)]
            if not last:
                c += [op(f"s_branch {join}"), label(nxt)]
        return c + [label(join)]

    def valu_A(self):
        q = single([op(f"v_and_b32 v{vU0}, 0x1f0, v{vL16}"),
                    vm(f"buffer_store_dword v96, v{vU0}, {r(WS,4,'s')}, s{sG} offen sc1", "g")], "stG", later("gate", 56), after("gate"))
        for b in range(2):
            for hf in range(2):
                q += single(self.phi8(16 * b + 8 * hf, 120 + 16 * hf) + cvt4(32 + 16 * b + 8 * hf))
            m = []
            for hf in range(2):
                pk, vv = r(16 * b + 8 * hf), r(32 + 16 * b + 8 * hf)
                m.append(op(f"{MF} {r(D1[b],16)}, {pk}, {vv}, {r(D1[b],16) if hf else 0}"))
                m.append(op(f"{MF} {r(D2[b],16)}, {pk}, {r(vONE)}, {r(D2[b],16) if hf else 0}"))
            q += single(m, f"kv{b}")
        for b in range(2):
            c = []
            for i in range(16):
                f, t = (D2[b] + i, D1[b] + i) if i < 8 else (D1[b] + i, D2[b] + i)
                c.append(op(f"v_cndmask_b32 v{D1[b]+i}, v{f}, v{t}, s[{mSEL}:{mSEL+1}]"))
            c += [ds(f"ds_write_b128 v{vHA}, {r(D1[b]+4*x)} offset:{(2*b+(x>>1))*WREG + 1024*(x&1)}", "kw") for x in range(4)]
            q += single(c, f"sel{b}", later(f"kv{b}", 56))
        q.append(Job(lambda s: [wlg("kw"), op("s_barrier")], None, lambda s: s.t >= s.dl["kw"], "xbar"))
        q += single([ds(f"ds_read_b128 {r(160+4*x)}, v{vHA+1} offset:{(x>>2)*SLOT + 1024*(x&3)}", f"kr{x}") for x in range(8)])
        q.append(Job(lambda s: [wlg("kr7")], None, lambda s: s.t >= s.dl["kr7"], "xrd"))
        c = [op(f"v_add_f32 v{160+i}, v{160+i}, v{168+i}") for i in range(8)]
        c += [op(f"v_add_f32 v{176+i}, v{176+i}, v{184+i}") for i in range(8)]
        q += single(c)
        c = [op(f"v_mov_b32 v{TMP+2*i+1}, v{vNV}") for i in range(8)]
        c += [op(f"v_add_f32 v{TMP+2*i}, v{160+i}, v{176+i}") for i in range(8)]
        c += [vm(f"buffer_store_dwordx4 {r(TMP+4*x)}, v{vL16}, {r(WS,4,'s')}, s{sKP} offen offset:{1024*x} sc1", "kvp") for x in range(4)]
        q += single(c, "stK", None, after("nonce", "ctl"))
        for u in range(4):
            ev = f"m63.{u>>1}"
            st = vm(f"buffer_store_dwordx4 {r(64+8*u)}, v{vST}, {r(WS,4,'s')}, 0 offen offset:{1024*u} sc1", "pq")
            q += single(self.phi8(64 + 8 * u, TMP + 8 * (u & 1)) + [st], f"stQ{u}", later(ev, 56), after(ev))
        return q

    def reducer_addr(self):
        return ops(f"""
        v_lshrrev_b32 v{vRK}, 3, v{vL}
        v_lshlrev_b32 v{vRK}, 14, v{vRK}
        v_bfe_u32 v{vR3}, v{vL}, 2, 1
        v_lshl_add_u32 v{vRK}, v{vR3}, 11, v{vRK}
        v_and_b32 v{vRT}, 48, v{vL16}
        v_add_u32 v{vRK}, v{vRK}, v{vRT}
        v_lshl_add_u32 v{vRT}, v{vR3}, 3, v{vRT}
        v_and_b32 v{vR3}, 7, v{vL}
        v_lshlrev_b32 v{vR3}, 11, v{vR3}
        """)

    def reducer_jobs(self):
        ld = [f"buffer_load_dwordx4 {r(160+8*i+4*p)}, v{vRK}, {r(WS,4,'s')}, s{(sRK, sRP)[i]} offen offset:{1024*p} sc1"
              for i in range(2) for p in range(2)]
        chk = ""
        for fn, d in (("min", 176), ("max", 177)):
            chk += f"v_{fn}3_u32 v{d}, v161, v163, v165\nv_{fn}3_u32 v{d}, v{d}, v167, v169\n"
            chk += f"v_{fn}3_u32 v{d}, v{d}, v171, v173\nv_{fn}_u32 v{d}, v{d}, v175\n"
        chk += (f"v_cmp_ne_u32 vcc, s{sN}, v176\nv_cmp_ne_u32 s[{sTM}:{sTM+1}], s{sN}, v177\ns_nop 4\n"
                f"s_or_b64 s[{sTM}:{sTM+1}], vcc, s[{sTM}:{sTM+1}]")

        def total(s):
            ok = self.lab("ok")
            lab = self.spin("\n".join(ld), chk, ok, self.duty(s))
            c = [wvm("kp")] + ops(chk) + [op(f"s_cbranch_scc1 {lab}"), label(ok)] + self.stamp(1, 2)
            val = [160, 162, 164, 166]
            c += [op(f"v_add_f32 v{x}, v{x}, v{x+8}") for x in val]
            c += [op(f"v_add_f32_dpp v{x}, v{x}, v{x} row_ror:8 row_mask:0xf bank_mask:0xf") for x in val]
            for w in (16, 32):
                c += [op(f"v_mov_b32 v{x+1}, v{x}") for x in val]
                c += [op(f"v_permlane{w}_swap_b32 v{x}, v{x+1}") for x in val]
                c += [op(f"v_add_f32 v{x}, v{x}, v{x+1}") for x in val]
            return c + ops("v_cvt_pk_bf16_f32 v160, v160, v162\nv_cvt_pk_bf16_f32 v161, v164, v166") + \
                [vm(f"buffer_store_dwordx2 v[160:161], v{vRT}, {r(WS,4,'s')}, s{sRT} offen sc1", "kvt")]
        return [Job(lambda s: [vm(x, "kp") for x in ld], after("stK", "valu"), later("stK", self.cfg["dF"])),
                Job(total, None, arrived("kp"), "kvt")]

    def nblk(self, role, n):
        return 4 if n < 32 else (3 if role == "H" else 2)

    def reads(self, role, n):
        buf, tag, out = WF[n % 3], f"r{n}", []
        if n < 32:
            i, ks = divmod(n, 4)
            s = i % 4
            out.append(ds(f"ds_read_b128 {r(XA+4*n,4,'a')}, v{vXA+4*(s>>1)+ks} offset:{SLOT*(s&1)}", tag))
            o = [4096 + 2048 * (b >> 1) for b in range(4)]
        else:
            s, e, ks = (n - 32) >> 3, (n >> 2) & 1, n & 3
            o = [2048 * e] * 2
        base = SLOT * (s & 1) + WREG * ks
        for b in range(self.nblk(role, n)):
            for t in range(2):
                if n >= 32 and b == 2:
                    a, off = vHA + (s >> 1), base + 4096 + 1024 * e + 256 * t
                else:
                    a, off = vWA + 2 * (s >> 1) + (b & 1), base + o[b] + 512 * t
                out.append(ds(f"ds_read_b64_tr_b16 {r(buf+4*b+2*t,2)}, v{a} offset:{off}", tag))
        return out

    def stage1(self, role):
        cfg = self.cfg
        s = Stream(cfg)
        s.emit(self.role_setup(role) + [op("s_waitcnt lgkmcnt(0)")])
        if cfg.get("stamps"):
            s.emit(ops(f"v_writelane_b32 v{vS0}, s4, 0\nv_writelane_b32 v{vS0+1}, s6, 0"))
        for i in range(cfg["pre"]):
            s.emit(self.chunk1(role, i))
        if role == "A":
            s.emit(self.gate_load())
        s.emit(self.late_setup(role))
        for n in range(28):
            self.pair_jobs(s, "P", n)
        for n in range(8):
            self.pair_jobs(s, "O", n)
        for g in str(cfg["g" + role]).split():
            idx, ev = g.split(":")
            j0 = s.q["pair"][2 * int(idx)]
            j0.hard = (lambda h, ev: lambda s: h(s) if ev in s.at else ("ctl" if ev[0].isupper() or ev.startswith("flag") else "valu"))(j0.hard, ev)
        if cfg["gp"]:
            s.emit(ops(f"""
            s_lshl2_add_u32 s3, s2, s{sW}
            v_lshlrev_b32 v67, 7, v{vL}
            v_and_b32 v68, 0x7ff, v67
            v_and_b32 v69, 0x1ff, v67
            v_and_b32 v67, 0xfff, v67
            s_mul_i32 s99, s3, {14*128}
            s_lshl_b32 s{sA}, s3, 9
            s_lshl_b32 s{sB}, s3, 11
            s_and_b32 s3, s3, 511
            s_mul_i32 s3, s3, {(28 if role == 'H' else 24)*128}
            """))
            s.emit([vm(f"buffer_load_dword v65, v{a}, {r(d,4,'s')}, s{o} offen", "gp")
                    for k, a, d, o in ((1, 67, W, 3), (2, 68, X, sB), (0, 68, W2, 99), (0, 69, WO, sA)) if cfg["gp"] >> k & 1])
        pf = [int(x, 16) for x in str(cfg["pf"])]
        if pf:
            s.emit(ops(f"""
            v_and_b32 v64, 15, v{vL}
            v_lshlrev_b32 v64, 7, v64
            s_lshl2_add_u32 s3, s{sR}, s{sW}
            s_mul_i32 s99, s3, {112*128}
            s_lshl_b32 s3, s3, 12
            """))
        touch = [[vm(f"buffer_load_dword v65, v64, {r(W2,4,'s')}, s99 offen", "pf"), op("s_add_u32 s99, s99, 2048")]] * 7
        touch += [[vm(f"buffer_load_dword v65, v64, {r(WO,4,'s')}, s3 offen offset:{2048*k}", "pf")] for k in range(2)]
        pm = str(cfg["pm" + role]).zfill(12)
        for i in range(cfg["pre"], 12):
            g = self.chunk1(role, i) if i < 8 else self.chunk2(role, i - 8)
            js = [Job(locked(x, None if k + 1 == len(g) or "m0" in g[k + 1][0].text else "chunk")) for k, x in enumerate(g)]
            if i >= 4:
                js[0].hard = after(f"b{i-4}")
            js[-1].ev = f"ic{i}"
            s.q["chunk"] += js
            for k, at in enumerate(pf):
                if at == i:
                    s.q["chunk"].append(Job((lambda t: lambda s: copy.deepcopy(t))(touch[k])))
            for _ in range(int(pm[i])):
                a, b = s.q["pair"].pop(0), s.q["pair"].pop(0)
                a.hard = lambda s: None if s.avail(s.stage) else "drain"
                s.q["chunk"] += [Job(relock(a.make), a.hard), b]
            if i + 1 == cfg["pstart"]:
                s.q["chunk"].append(Job(lambda s: [], ev="pgo"))
        s.stage = [((4, q, None), None) for q in range(4)]
        if role == "H":
            s.stage += [((x, 3, None), f"b{4+x}") for x in range(4)]
            s.stage += [((x, q, None), f"b{8+x}") for x in range(4) for q in range(3)]
            s.ring = [(x, None) for x in range(12, 16)] + [(x, "S1") for x in range(6, 12)] + [(x, f"st{8+x}") for x in range(6)]
        else:
            s.stage += [((x, q, None), f"b{4+x}") for x in range(2) for q in (2, 3)]
            s.stage += [((x, q, None), "xrd") for x in (2, 3) for q in (2, 3)]
            s.stage += [((x, q, None), f"b{8+x}") for x in range(4) for q in range(2)]
            s.ring = [(x, "S1") for x in range(4, 12)] + [(x, f"stQ{x}") for x in range(4)] + [(x, "kvt") for x in range(12, 16)]
        s.q["valu"] = single(self.addr2(), "addr2", None, after("ic7", "chunk"))
        s.q["valu"] += self.valu_H() if role == "H" else single(self.reducer_addr(), None, None, after("n30")) + self.valu_A()
        s.q["ctl"] = self.nonce_jobs()
        if role == "H":
            j = {"fE": self.flag("E", "hE", "st7", vFL, st=1), "fL": self.flag("L", "hL", "st13", vFL, imm=32, st=3)}
        else:
            j = {"fA": self.flag("A", "pq", "stQ3", vFL, st=3), "f3": self.flag("3", "kvt", "kvt", vR3, f"s{sR3}", st=8, q="ctl")}
            j["ld"], j["sum"] = self.reducer_jobs()
        s.q["ctl"] += self.polls(j, role)
        self.stage2_jobs(s)
        s.emit([wvm("c0"), op("s_barrier")] + self.stamp(1) + self.stamp(1, 3) + self.reads(role, 0) + self.reads(role, 1))
        self.log.append(f"{role} start {s.t}")
        for n in range(64):
            nb = self.nblk(role, n)
            if n == 32:
                s.emit(self.stamp(2))
                self.log.append(f"{role} phase2 {s.t}")
                if role == "A":
                    s.emit([wvm("gf")] + self.gate_mfma())
                    extra = 128 * (8 // (cfg["rm"] + 1) - 1)
                    s.t -= extra
                    s.mf -= extra
                    s.mark("gate")
            rd = self.reads(role, n + 2) if n + 2 < 64 else []
            bar = n >> 2 if n < 32 and n % 4 == 2 else (8 + ((n - 32) >> 3) if n >= 32 and n % 8 == 6 else None)
            s.emit(wlg(f"r{n}"))
            for b in range(nb):
                acc = 16 * b + (0 if n < 32 else 64)
                w_, x_ = r(WF[n % 3] + 4 * b), r(XA + 4 * (n & 31), 4, "a")
                if role == "A" and n < 32:
                    w_, x_ = x_, w_
                s.emit(op(f"{MF} {r(acc,16)}, {w_}, {x_}, {r(acc,16) if n & 31 else 0}"))
                s.mark(f"m{n}.{b}")
                if b == 0 and bar is not None:
                    if bar < 11:
                        if bar + 1 >= cfg["pre"]:
                            s.require(f"ic{bar+1}", "chunk")
                        s.until(s.dv[f"c{bar+1}"])
                    s.emit([wlg(f"r{n+1}")] + ([wvm(f"c{bar+1}")] if bar < 11 else []) + [op("s_barrier")] + self.stamp(bar + 2, 3))
                    s.mark(f"b{bar}")
                    self.log.append(f"b{bar} {s.t}")
                s.emit(rd[(b * len(rd) + nb - 1) // nb:((b + 1) * len(rd) + nb - 1) // nb])
                s.gap(0 if n < 32 else cfg["rate" if role == "H" else "rateA"])
            s.mark(f"n{n}")
            if n == cfg["pstart"] > 12:
                s.mark("pgo")
        s.mark("S1")
        s.emit(self.stamp(3) + self.stamp(7, 2))
        self.log.append(f"{role} S1 {s.t} pf {s.pf}")
        return s

    def order(self):
        k = self.cfg["nplain"]
        if self.cfg["att"]:
            o = [("H", n, 0) for n in range(k - 1)] + [("o", 0, 0), ("o", 0, 1), ("H", k - 1, 0)]
            for n in range(8):
                for ii in range(2):
                    o += [("w", n, ii)] + ([("o", n + 1, ii)] if n < 7 else [])
            return o + [("H", n, 0) for n in range(k, 28)]
        o = [("H", n, 0) for n in range(k)]
        h = k
        for n in range(8):
            o += [("o", n, 0), ("o", n, 1)]
            if h < 28:
                o.append(("H", h, 0))
                h += 1
            o += [("w", n, 0), ("w", n, 1)]
        return o + [("H", n, 0) for n in range(h, 28)]

    def stage2_jobs(self, s):
        def slot(ev):
            return lambda s: ("pair" if ev != "E" and self.cfg["pfirst"] and s.q["pair"] and s.avail(s.stage) else
                              "ctl" if ev not in s.at else None if s.avail(s.ring) else "valu")

        hk = self.cfg["hack"] & 2

        def two(name, va, so, imm, ev):
            def mk(i):
                def f(s):
                    if i == 0:
                        s.held[name] = RING + 8 * s.take(s.ring)
                    return [vm(f"buffer_load_dwordx4 {r(s.held[name]+4*i)}, v{vL16 if hk else va+i}, {r(WS,4,'s')}, {0 if hk else 's%d' % so} offen offset:{imm} sc1", name)]
                return f
            return [Job(mk(0), slot(ev)), Job(mk(1), ev="i" + name)]

        def gload(s):
            x = s.held["G"] = RING + 8 * s.take(s.ring)
            c = [wvm("G")]
            for ii in range(2):
                b = x + 4 * ii
                c += ops(f"""
                v_add_f32 v{b}, v{b}, v{b+1}
                v_add_f32 v{b+2}, v{b+2}, v{b+3}
                v_add_f32 v{b}, v{b}, v{b+2}
                v_mov_b32 v{b+1}, v{b}
                v_permlane32_swap_b32 v{b}, v{b+1}
                v_add_f32 v{b}, v{b}, v{b+1}
                v_min_f32 v{b}, 0x41f00000, v{b}
                v_mul_f32 v{b}, {LOG2E:#x}, v{b}
                v_exp_f32 v{vES+ii}, v{b}
                v_add_f32 v{b}, 1.0, v{vES+ii}
                v_rcp_f32 v{vOM+ii}, v{b}
                """)
            s.q["valu"] += single(c, "gdone", arrived("G"))
            s.ring.append(((x - RING) // 8, "gdone"))
            return [vm(f"buffer_load_dwordx4 {r(x+4*i)}, v{vL16}, {r(WS,4,'s')}, s{sGA} offen offset:{1024*i} sc1", "G") for i in range(2)]
        first = True
        for kind, n, ii in self.order():
            if kind == "H":
                so, i = self.kbase(n)
                s.q["hq"] += two(f"h{n}", vHV, so, 1024 * i, "E" if n < 16 else "L")
            elif kind == "o" and ii == 0:
                so, i = OQ + (n >> 1), n & 1
                if first:
                    s.q["hq"].append(Job(gload, slot("A"), None, "iG"))
                    first = False
                s.q["hq"] += two(f"q{n}", vPQ, so, 1024 * i, "A")
                kv = vm(f"buffer_load_dwordx4 {r(KVA+4*n,4,'a')}, v{vKV}, {r(WS,4,'s')}, s{so} offen offset:{1024*i} sc1", f"k{n}")
                s.q["hq"].append(Job((lambda kv: lambda s: [kv])(kv), lambda s: "ctl" if "K" not in s.at else None if "S1" in s.at else "stuck", None, f"ik{n}"))

    def proc(self, n, ii):
        base = OB + 16 * ii
        num, den = (base, base + 8) if n % 2 == 0 else (base + 8, base)
        t = vU0 + ii
        c = ops(f"v_add_f32 v{t}, {EPS:#x}, v{den}\nv_rcp_f32 v{t}, v{t}\nv_mul_f32 v{t}, v{t}, v{vES+ii}")
        c += [op(f"v_mul_f32 v{num+x}, v{num+x}, v{t}") for x in range(8)]
        return c + cvt4(num)

    def stage2(self, s, name):
        cfg = self.cfg
        s.Q = cfg["Q2"]
        rate = cfg["rate2"]
        a3 = False
        for kind, n, ii in self.order():
            if not a3 and not s.q["drain"]:
                s.q["valu"] += single([wlg("dO7")] + self.addr3(), "addr3")
                a3 = True
            if kind == "H":
                s.require(f"ih{n}", "hq")
                s.require(f"dP{n}", "drain")
                s.until(s.dv[f"h{n}"])
                if n in (0, 16):
                    s.emit(self.stamp(4 + n // 16))
                    self.log.append(f"{name} H{n} {s.t}")
                x0 = s.held.pop(f"h{n}")
                s.emit([wvm(f"h{n}"), wlg(f"dP{n}")])
                for x in range(4):
                    ii, nb = x >> 1, x & 1
                    acc = r(32 * ii + 16 * nb, 16)
                    s.emit(op(f"{MF} {acc}, {r(8*n+4*nb,4,'a')}, {r(x0+4*ii)}, {acc if n else 0}"))
                    if x == 3:
                        s.ring.append(((x0 - RING) // 8, None))
                        s.mark(f"H{n}")
                    s.gap(rate)
            elif kind == "o":
                s.require(f"ik{n}", "hq")
                s.require("gdone", "valu")
                if name == "H":
                    s.require("st13", "valu")
                else:
                    s.require("stQ3", "valu")
                s.until(s.dv[f"k{n}"])
                x0 = s.held.pop(f"q{n}") if ii else s.held[f"q{n}"]
                s.emit(wvm(f"k{n}"))
                s.emit(op(f"{MF} {r(OB+16*ii,16)}, {r(KVA+4*n,4,'a')}, {r(x0+4*ii)}, 0"))
                s.mark(f"o{n}.{ii}")
                at = next((i + 1 for i, jb in enumerate(s.q["valu"]) if jb.ev and jb.ev[0] == "p"), 0)
                s.q["valu"][at:at] = single(self.proc(n, ii), f"p{n}.{ii}", later(f"o{n}.{ii}", cfg.get("dO", 56)))
                if ii:
                    s.ring.append(((x0 - RING) // 8, None))
                s.gap(rate)
            else:
                s.require(f"dO{n}", "drain")
                s.emit(wlg(f"dO{n}"))
                s.require(f"p{n}.{ii}", "valu")
                if n == 0 and ii == 0:
                    self.log.append(f"{name} w0 {s.t}")
                for nb in range(2):
                    acc = r(32 * ii + 16 * nb, 16)
                    s.emit(op(f"{MF} {acc}, {r(8*n+4*nb,4,'a')}, {r(OB+16*ii+8*(n&1))}, {acc}"))
                    s.gap(rate)
        if not a3:
            s.q["valu"] += single([wlg("dO7")] + self.addr3(), "addr3")
        s.require("addr3", "valu")
        for k, q in s.q.items():
            assert not q, (name, k, len(q))
        s.emit(self.stamp(6))
        self.log.append(f"{name} last {s.t} pf {s.pf} ev " + " ".join(f"{e}={s.at[e]}" for e in ("st7", "stK", "flagE", "flagF", "st13", "stQ3", "E", "kvt", "flagL", "flagA", "flag3", "A", "L", "K", "iP15", "iP27", "iO7") if e in s.at))
        c = [ds(f"ds_bpermute_b32 v{vES+ii}, v{vBP}, v{vOM+ii}", "bp") for ii in range(2)]
        for ii in range(2):
            for nb in range(2):
                for j in range(4):
                    c.append(ds(f"ds_write_b128 v{vRW+j}, {r(32*ii+16*nb+4*j)} offset:{SLOT*ii+128*nb}", "rw"))
        c += [lg0(), op("s_barrier")]
        for ii in range(2):
            for p in range(4):
                for z in range(2):
                    c.append(ds(f"ds_read_b128 {r(32*ii+8*p+4*z)}, v{vRR+z} offset:{WREG*p+SLOT*ii}", f"rr{ii}.{p}"))
        for ii in range(2):
            b = 32 * ii
            c.append(wlg(f"rr{ii}.1"))
            c += [op(f"v_pk_add_f32 {r(b+x,2)}, {r(b+x,2)}, {r(b+8+x,2)}") for x in range(0, 8, 2)]
            c.append(wlg(f"rr{ii}.3"))
            c += [op(f"v_pk_add_f32 {r(b+16+x,2)}, {r(b+16+x,2)}, {r(b+24+x,2)}") for x in range(0, 8, 2)]
            c += [op(f"v_pk_add_f32 {r(b+x,2)}, {r(b+x,2)}, {r(b+16+x,2)}") for x in range(0, 8, 2)]
            c += [op(f"v_mul_f32 v{b+x}, v{b+x}, v{vES+ii}") for x in range(8)]
            c += cvt4(b)
            c.append(vm(f"buffer_store_dwordx4 {r(b)}, v{vOUT}, {r(OUT,4,'s')}, s{sOB if ii else sOA} offen", "o"))
        if cfg.get("stamps"):
            c += [vm0()] + self.stamp({1: 7, 2: 9, 3: 14}[cfg["stamps"]], 0) + ops(f"""
            s_cmp_lg_u32 s{sW}, {cfg.get('stamp_wave', 0)}
            s_cbranch_scc1 L_end
            s_lshl_b32 s{sA}, s2, 8
            s_add_u32 s{sA}, s{sA}, {WS_STAMP}
            v_lshlrev_b32 v0, 3, v{vL}
            s_mov_b64 exec, 0xffffffff
            buffer_store_dwordx2 {r(vS0,2)}, v0, {r(WS,4,'s')}, s{sA} offen
            """)
        s.emit(c + [op("s_endpgm")])
        return s.items

    @staticmethod
    def gates(j, spec):
        for g in spec.split():
            name, ev = g.split(":")
            j[name].hard = (lambda h, ev: lambda s: (h(s) if h else None) if ev in s.at else ("hq" if ev[0] == "i" else "valu"))(j[name].hard, ev)

    def build(self):
        c = self.head()
        c += self.stage2(self.stage1("H"), "H")
        c += [label("L_A"), reset()]
        c += self.stage2(self.stage1("A"), "A")
        c += self.tail + [label("L_end"), op("s_endpgm")]
        lines, added = pad(resolve(flat(c)))
        hdr = open(f"cdna_kernels/{NAME}.s.ref").read().split("; Override launch")[0]
        t = hdr + "; @launch grid=(256,1,1) block=(256,1,1) lds=163840\n"
        t += f'.amdgcn_target "amdgcn-amd-amdhsa--gfx950"\n.text\n.globl {K}\n.p2align 8\n.type {K},@function\n{K}:\n'
        t += text(lines)
        t += '.section .rodata,"a"\n.p2align 6\n' + descriptor(K, 512, 256, 102)
        return t, added, len(lines)


def main():
    cfg = {}
    for a in sys.argv[2:]:
        k, _, v = a.partition("=")
        cfg[k] = (int(v) if v.lstrip("-").isdigit() else v.replace(",", " ")) if v else 1
    g = Gen(cfg)
    s, added, n = g.build()
    open(sys.argv[1], "w").write(s)
    print(sys.argv[1], "lines", n, "nop states", added, "|", "; ".join(g.log))


if __name__ == "__main__":
    main()
```

```python
import copy
import sys
from prog import op, vm, ds, wvm, wlg, vm0, lg0, label, reset, save, restore, ops, flat, resolve, pad, text, TRANS
from asmlib import descriptor

NAME = "gated_mix__linear_attn_block__dense_activation_silu__prompt"
K = NAME + "_kernel"
MF = "v_mfma_f32_32x32x16_bf16"

WS_H, WS_PQ, WS_KVP, WS_KVT = 0, 8 << 20, 14 << 20, 11 << 20
WS_G = WS_KVT + 65536
WS_F1 = 12 << 20
WS_F2 = WS_F1 + 16384
WS_F3 = WS_F1 + 32768
WS_STAMP = 128 << 20
SLOT, WREG = 32768, 8192

X, W, W2, WO, WS, OUT, GT, DBG = 8, 12, 16, 20, 24, 28, 32, 36
sW, sRB, sJ, sC, sXO, sWO, sLB, sN = 40, 41, 42, 43, 44, 45, 46, 47
sPT, sT, sTN, sA, sB, sSP, sNL, sE = 48, 49, 50, 51, 52, 53, 54, 55
sR, sH0, sH1, sHL, sTM = 56, 57, 58, 59, 60
sHH, sG = 62, 63
EQ, LQ, OQ = 64, 68, 72
mE, mL, mA, mLA, mSEL, mEA = 76, 78, 80, 82, 84, 100
sHV, sPQ, sGA, sF1, sF3, sKP, sRP, sRK, sRT, sR3, sOA, sOB, sGI = range(86, 99)

WF = (112, 128, 144)
TMP, GF, OB = 192, 192, 192
D1, D2 = (160, 176), (192, 96)
vWE, vF2, vXA, vWA, vHA, vXD, vWD = 208, 210, 211, 219, 223, 225, 229
vRP, vRK, vRT, vR3 = 211, 212, 213, 214
vHV, vPQ, vKV, vNV, vF1, vF3 = 225, 227, 229, 230, 231, 232
vPD, vPA = 233, 235
vRW, vRR, vOUT, vBP = 233, 237, 239, 240
vL, vL16, vN, vST, vFL, vS0 = 241, 242, 243, 244, 245, 246
vT0, vT1, vT2 = 248, 249, 250
vONE, vES, vOM = 248, 248, 250
vU0, vU1, vU2, vU3 = 252, 253, 254, 255
RING, XA, KVA = 64, 128, 224

LOG2E, NLOG2E, EPS = 0x3FB8AA3B, 0xBFB8AA3B, 0x358637BD
SPIN = 200000

DEF = dict(pw=0, p3=0, gph=0, c3=3, rot=0, rotr=0, hyb=0, mfc=32, mfc2=32, rm=3, pre=2, Q=60, Qc=60, Q2=60, B=72, lat=1000, lats=1200, rate=40, rateA=40, rate2=24, dE=500, dL=500,
           dF=1500, tE=0, tL=3000, tK=3000, dK=500, nplain=20, pk=0, pstart=12, pmH=0, pmA=0, latP=0, pf="", gH="", gA="", gp=0, pg=0, pmax=99, att=0, hack=0, pfirst=1, cH="cE:st13", cA="sum:stQ3",
           dA=0, tA=1500, ctlH="fE pE cE fL pLA pK cLA cK", ctlA="ld sum fA f3 pE cE pLA pK cLA cK")


def r(b, n=4, k="v"):
    return f"{k}[{b}:{b+n-1}]"


def srd(d, nbytes):
    return f"s_mov_b32 s{d+2}, {nbytes:#x}\ns_mov_b32 s{d+3}, 0x20000"


def cvt4(a):
    return [op(f"v_cvt_pk_bf16_f32 v{a+i}, v{a+2*i}, v{a+2*i+1}") for i in range(4)]


class Job:
    def __init__(self, make, hard=None, soft=None, ev=None):
        self.make, self.hard, self.soft, self.ev = make, hard, soft, ev


def after(ev, q="stuck"):
    return lambda s: None if ev in s.at else q


class Stream:
    def __init__(self, cfg):
        self.cfg = cfg
        self.items = []
        self.t = self.mf = self.pf = self.lastv = 0
        self.dv, self.dl, self.at = {}, {}, {}
        self.q = {k: [] for k in ("ctl", "chunk", "hq", "pair", "drain", "valu")}
        self.stage, self.ring, self.held = [], [], {}
        self.Q = cfg["Q"]
        self.m0q = None
        self.lastp = self.fly = 0
        self.mfc = cfg["mfc"]

    def mark(self, ev):
        self.at.setdefault(ev, self.t)

    def emit(self, x):
        for it in flat([x]):
            self.items.append(it)
            k, s = it.kind, it.text
            if k == "op":
                if s.startswith("v_mfma"):
                    self.t = max(self.t, self.mf)
                    self.mf = self.t + self.mfc
                    self.t += 8
                elif s.startswith("s_nop"):
                    self.t += int(s.split()[1]) + 1
                else:
                    self.t += 8 if s.split()[0].replace("_e64", "") in TRANS else 4
            elif k == "vm":
                self.t = max(self.t + 4, self.pf - self.cfg["B"])
                self.pf = max(self.pf, self.t) + (72 if "x4" in s else 40 if "x2" in s else 30)
                self.lastv = max(self.lastv, self.pf + self.cfg["lats" if "store" in s else "lat"])
                self.dv[it.tag] = self.lastv
            elif k == "ds":
                self.t += 4
                self.dl[it.tag] = self.t + 100
            elif k == "wvm":
                tg = it.tag
                self.t = max([self.t] + ([self.lastv] if tg == "*" else [self.dv[x] for x in (tg if isinstance(tg, list) else [tg])]))
            elif k == "wlg":
                tg = it.tag
                self.t = max([self.t] + (list(self.dl.values()) if tg == "*" else [self.dl[x] for x in (tg if isinstance(tg, list) else [tg])]))

    def run(self, qn):
        j = self.q[qn].pop(0)
        self.emit(j.make(self))
        if j.ev:
            self.mark(j.ev)

    def ok(self, qn):
        q = self.q[qn]
        if not q:
            return False
        j = q[0]
        if qn in ("chunk", "pair") and self.m0q not in (None, qn):
            return False
        return (j.hard is None or j.hard(self) is None) and (j.soft is None or j.soft(self))

    def step(self, lim, valu=True, idle=0):
        back = 0 if self.pf - self.cfg["B"] < idle else self.pf - self.t
        for qn, cap, cond in (("ctl", 2, True), ("chunk", 1, back < self.cfg["Qc"]), ("hq", 1, back < self.Q),
                              ("pair", 1, back < self.Q), ("drain", 1, True)):
            key = "ld" if qn in ("chunk", "hq", "pair") else qn
            if cond and lim.get(key, 0) < cap and self.ok(qn):
                lim[key] = lim.get(key, 0) + 1
                self.run(qn)
                return True
        if valu and self.ok("valu"):
            t0 = self.t
            self.run("valu")
            lim["v"] = lim.get("v", 0) + self.t - t0
            return True
        return False

    def gap(self, rate):
        lim = {}
        while self.step(lim, self.t < self.mf - 4 or lim.get("v", 0) < rate):
            pass

    def force(self, qn):
        assert qn != "stuck" and self.q[qn], f"schedule stuck on {qn}"
        j = self.q[qn][0]
        b = j.hard(self) if j.hard else None
        if qn in ("chunk", "pair") and self.m0q not in (None, qn):
            b = self.m0q
        if b is None:
            self.run(qn)
        else:
            self.force(b)

    def require(self, ev, qn):
        while ev not in self.at:
            if not self.step({}) and not self.step({}, idle=1 << 30) and not self.unblock(1 << 30):
                self.force(qn)

    def unblock(self, t):
        q = self.q["drain"]
        if self.fly < self.cfg["pmax"] or not self.q["pair"] or not q or q[0].hard(self) is not None or self.dv[q[0].ev[1:]] > t:
            return False
        self.run("drain")
        return True

    def until(self, t):
        while self.t < t and (self.step({}) or self.step({}, idle=t) or self.unblock(t)):
            pass

    def take(self, pool):
        for i, (x, ev) in enumerate(pool):
            if ev is None or ev in self.at:
                return pool.pop(i)[0]
        return None

    def avail(self, pool):
        return any(ev is None or ev in self.at for _, ev in pool)


def single(items, ev=None, soft=None, hard=None):
    items = flat(items)
    out = [Job((lambda it: lambda s: [it])(it)) for it in items]
    out[0].soft, out[0].hard = soft, hard
    out[-1].ev = ev
    return out


def locked(x, q):
    def mk(s):
        s.m0q = q
        return x
    return mk


def relock(make):
    def mk(s):
        x = make(s)
        s.m0q = "chunk"
        return x
    return mk


def later(ev, d):
    return lambda s: ev in s.at and s.t >= s.at[ev] + d


def arrived(tag):
    return lambda s: s.t >= s.dv[tag]


class Gen:
    def __init__(self, cfg):
        self.cfg = dict(DEF, **cfg)
        self.tail = []
        self.uid = 0
        self.log = []

    def lab(self, stem):
        self.uid += 1
        return f"L_{stem}{self.uid}"

    def stamp(self, k, kind=1):
        if self.cfg.get("stamps") != kind and not (self.cfg.get("stamps") and kind == 0):
            return []
        return [op("s_memrealtime s[4:5]"), op("s_memtime s[6:7]"), lg0(),
                op(f"v_writelane_b32 v{vS0}, s4, {k}"), op(f"v_writelane_b32 v{vS0+1}, s6, {k}")]

    def head(self):
        c = ops(f"""
        s_cmp_ge_u32 s2, 256
        s_cbranch_scc1 L_end
        s_load_dwordx2 s[{X}:{X+1}], s[0:1], 0
        s_load_dwordx2 s[{W2}:{W2+1}], s[0:1], 40
        s_load_dwordx2 s[{WO}:{WO+1}], s[0:1], 16
        s_load_dwordx2 s[{WS}:{WS+1}], s[0:1], 72
        s_load_dwordx2 s[{OUT}:{OUT+1}], s[0:1], 56
        s_load_dwordx2 s[{GT}:{GT+1}], s[0:1], 48
        s_load_dwordx2 s[{DBG}:{DBG+1}], s[0:1], 64
        s_memrealtime s[4:5]
        """)
        if self.cfg.get("stamps"):
            c += ops(f"s_memtime s[6:7]\nv_mov_b32 v{vS0}, 0\nv_mov_b32 v{vS0+1}, 0")
        c += ops(f"""
        v_lshrrev_b32 v{vT0}, 6, v0
        v_and_b32 v{vL}, 63, v0
        s_and_b32 s{sE}, s2, 7
        v_readfirstlane_b32 s{sW}, v{vT0}
        s_lshr_b32 s{sR}, s2, 3
        s_and_b32 s{sA}, s{sE}, 1
        s_lshl_b32 s{sA}, s{sA}, 3
        s_add_u32 s{sTN}, s{sR}, {self.cfg["rotr"]}
        s_and_b32 s{sTN}, s{sTN}, 7
        s_add_u32 s{sRB}, s{sTN}, s{sA}
        s_add_u32 s{sTN}, s{sR}, {self.cfg["rot"]}
        s_and_b32 s{sTN}, s{sTN}, 7
        s_lshr_b32 s{sT}, s{sR}, 3
        s_and_b32 s{sJ}, s{sE}, 6
        s_and_b32 s{sA}, s{sT}, 1
        s_add_u32 s{sJ}, s{sJ}, s{sA}
        s_lshl_b32 s{sLB}, s{sW}, 13
        s_add_u32 s{sC}, s{sRB}, s{sJ}
        {srd(X, 2 << 20)}
        v_lshrrev_b32 v{vT0}, 3, v{vL}
        v_lshrrev_b32 v{vT1}, 4, v{vL}
        v_and_b32 v{vT2}, 7, v{vL}
        v_xor_b32 v{vU0}, v{vT1}, v{vT2}
        s_lshl_b32 s{sA}, s{sRB}, 17
        s_lshl_b32 s{sTM}, s{sW}, 15
        s_add_u32 s{sA}, s{sA}, s{sTM}
        v_lshlrev_b32 v{vU1}, 10, v{vT0}
        v_lshl_add_u32 v{vU0}, v{vU0}, 4, v{vU1}
        v_add_u32 v{vXD}, s{sA}, v{vU0}
        v_xor_b32 v{vU0}, 64, v{vXD}
        v_add_u32 v{vXD+1}, {8192-1024}, v{vU0}
        v_add_u32 v{vXD+2}, {2*(8192-1024)}, v{vXD}
        v_add_u32 v{vXD+3}, {3*(8192-1024)}, v{vU0}
        v_and_b32 v{vT1}, 1, v{vT1}
        v_lshlrev_b32 v{vT1}, 2, v{vT1}
        v_xor_b32 v{vT1}, v{vT1}, v{vT2}
        v_lshlrev_b32 v{vT1}, 4, v{vT1}
        s_cmp_ge_u32 s{sT}, 2
        s_cbranch_scc1 L_A
        """)
        return c

    def role_setup(self, role):
        RB = 3584 if role == "H" else 3072
        c = ops(f"s_load_dwordx2 s[{W}:{W+1}], s[0:1], {32 if role == 'H' else 8}")
        c += ops(srd(W, 512 * RB))
        if role == "H":
            c += ops(f"""
            s_add_u32 s{sC}, s{sC}, 4
            s_mul_i32 s{sB}, s{sJ}, 448
            s_bitcmp1_b32 s{sJ}, 0
            s_cselect_b32 s{sH0}, 192, 0
            s_cselect_b32 s{sHL}, 64, 256
            s_cselect_b32 s{sHH}, 0, 384
            s_add_u32 s{sH0}, s{sH0}, s{sB}
            s_add_u32 s{sHL}, s{sHL}, s{sB}
            s_add_u32 s{sHH}, s{sHH}, s{sB}
            """)
        else:
            c += ops(f"s_lshl_b32 s{sHL}, s{sJ}, 7\ns_add_u32 s{sH0}, s{sHL}, 1024")
        c += ops(f"""
        s_and_b32 s{sC}, s{sC}, {self.cfg["rm"]}
        s_mul_i32 s{sA}, s{sW}, {16*RB}
        s_add_u32 s{sB}, s{sA}, s{sH0}
        v_mul_u32_u24 v{vU0}, {RB}, v{vT0}
        v_add3_u32 v{vWD}, v{vU0}, v{vT1}, s{sB}
        """)
        ls = 128 if role == "H" else 1024
        for x in range(1, 4):
            c.append(op(f"v_add_u32 v{vWD+x}, {(x>>1)*ls + (x&1)*(8*RB-1024)}, v{vWD}"))
        return c

    def next_chunk(self, role, first=False, x=True):
        RB = 3584 if role == "H" else 3072
        c = [] if first else ops(f"s_add_u32 s{sC}, s{sC}, 1\ns_and_b32 s{sC}, s{sC}, 7")
        if x:
            c += ops(f"s_lshl_b32 s{sXO}, s{sC}, 7")
        return c + ops(f"s_mul_i32 s{sWO}, s{sC}, {64*RB}")

    def dma(self, v, sr, so, tag, imm=0):
        return vm(f"buffer_load_dwordx4 v{v}, {r(sr,4,'s')}, s{so} offen{f' offset:{imm}' if imm else ''} lds", tag)

    def chunk1(self, role, i):
        base, tag = (i % 4) * SLOT, f"c{i}"
        g = []
        for L in range(2):
            m = [op(f"s_add_u32 m0, s{sLB}, {base+4096+2048*L}")]
            g.append((m + self.next_chunk(role, i == 0) if L == 0 else m) + [self.dma(vWD + 2 * L, W, sWO, tag)])
            g.append([self.dma(vWD + 2 * L + 1, W, sWO, tag, 1024)])
        g.append([op(f"s_add_u32 m0, s{sLB}, {base}"), self.dma(vXD, X, sXO, tag)])
        g += [[self.dma(vXD + p, X, sXO, tag, 1024 * p)] for p in range(1, 4)]
        return g

    def chunk2(self, role, d):
        base, tag = d * SLOT, f"c{8+d}"
        g = []
        for e in range(2):
            g.append([op(f"s_add_u32 m0, s{sLB}, {base+2048*e}")] + self.next_chunk(role, x=False) + [self.dma(vWE, W, sWO, tag)])
            g.append([self.dma(vWE + 1, W, sWO, tag, 1024)])
            if role == "H":
                g.append([op(f"s_add_u32 m0, s{sLB}, {base+4096+1024*e}"), self.dma(vWE + 2, W, sWO, tag)])
        return g

    def gate_load(self):
        rm = self.cfg["rm"]
        c = ops(f"""
        {srd(GT, 1024)}
        s_and_b32 s{sGI}, s{sJ}, {7 & ~rm}
        s_add_u32 s{sA}, s{sRB}, s{sJ}
        s_and_b32 s{sA}, s{sA}, {rm}
        s_add_u32 s{sA}, s{sA}, s{sGI}
        s_lshl_b32 s{sA}, s{sA}, 7
        v_lshrrev_b32 v{vU0}, 5, v{vL}
        v_lshlrev_b32 v{vU0}, 4, v{vU0}
        """)
        return c + [vm(f"buffer_load_dwordx4 {r(GF+4*ks)}, v{vU0}, {r(GT,4,'s')}, s{sA} offen offset:{32*ks}", "gf")
                    for ks in range(4)]

    def late_setup(self, role):
        RB = 3584 if role == "H" else 3072
        c = ops(f"""
        {srd(WS, 256 << 20)}
        {srd(W2, 1792*1024)}
        {srd(WO, 512*1024)}
        {srd(OUT, 2 << 20)}
        {srd(DBG, 256)}
        s_mov_b32 s{sNL}, {NLOG2E if role == 'H' else LOG2E:#x}
        s_mul_i32 s{sA}, s{sW}, {16*RB}
        s_add_u32 s{sB}, s{sA}, s{sHL}
        v_mul_u32_u24 v{vU0}, {RB}, v{vT0}
        v_add3_u32 v{vWE}, v{vU0}, v{vT1}, s{sB}
        v_add_u32 v{vWE+1}, {8*RB-1024}, v{vWE}
        """)
        if role == "H":
            c += ops(f"""
            v_lshrrev_b32 v{vU0}, 2, v{vL}
            v_mul_u32_u24 v{vU0}, {RB}, v{vU0}
            v_and_b32 v{vU1}, 3, v{vL}
            v_lshlrev_b32 v{vU1}, 4, v{vU1}
            s_add_u32 s{sB}, s{sA}, s{sHH}
            v_add3_u32 v{vWE+2}, v{vU0}, v{vU1}, s{sB}
            s_lshl_b32 s{sH0}, s{sH0}, 5
            s_add_u32 s{sH1}, s{sH0}, 4096
            s_lshl_b32 s{sHL}, s{sHL}, 5
            s_lshl_b32 s{sHH}, s{sHH}, 5
            """)
        c += ops(f"s_mul_i32 s{sB}, s{sW}, {28*1024}\ns_lshl_b32 s{sPT}, s{sW}, 13")
        for q in range(4):
            c += ops(f"""
            s_add_u32 s{sA}, s{sT}, {q}
            s_and_b32 s{sA}, s{sA}, 3
            s_lshl_b32 s{EQ+q}, s{sA}, 12
            s_add_u32 s{EQ+q}, s{EQ+q}, s{sB}
            s_cmp_ge_u32 s{sA}, 2
            s_cselect_b32 s{sTM}, {12*1024}, 0
            s_add_u32 s{EQ+q}, s{EQ+q}, s{sTM}
            s_mul_i32 s{LQ+q}, s{sA}, 3072
            s_add_u32 s{LQ+q}, s{LQ+q}, s{sB}
            s_add_u32 s{LQ+q}, s{LQ+q}, 8192
            s_lshl_b32 s{OQ+q}, s{sA}, 11
            s_add_u32 s{OQ+q}, s{OQ+q}, s{sPT}
            """)
        c += ops(f"""
        s_lshl2_add_u32 s{sT}, s{sE}, s{sT}
        s_mul_i32 s{sHV}, s{sT}, {2*112*1024}
        s_lshl_b32 s{sOA}, s{sT}, 16
        s_add_u32 s{sPQ}, s{sOA}, {WS_PQ}
        s_add_u32 s{sOA}, s{sOA}, s{sLB}
        s_lshl_b32 s{sA}, s{sTN}, 7
        s_add_u32 s{sOA}, s{sOA}, s{sA}
        s_add_u32 s{sOB}, s{sOA}, 32768
        s_lshl_b32 s{sGA}, s{sT}, 11
        s_add_u32 s{sGA}, s{sGA}, {WS_G}
        s_lshl_b32 s{sF1}, s{sT}, 9
        s_add_u32 s{sF1}, s{sF1}, {WS_F1}
        s_lshl_b32 s{sF3}, s{sE}, 11
        s_lshl_b32 s{sB}, s{sW}, 9
        s_add_u32 s{sF3}, s{sF3}, s{sB}
        s_add_u32 s{sF3}, s{sF3}, {WS_F3}
        s_lshl_b32 s{sB}, s{sW}, 1
        s_lshl_b32 s{mE}, 3, s{sB}
        s_mov_b32 s{mE+1}, s{mE}
        s_lshl_b32 s{mL}, s{mE}, 8
        s_mov_b32 s{mL+1}, s{mL}
        s_mov_b32 s{mA}, 0xff0000
        s_mov_b32 s{mA+1}, 0xff0000
        s_or_b64 s[{mLA}:{mLA+1}], s[{mL}:{mL+1}], s[{mA}:{mA+1}]
        s_or_b64 s[{mEA}:{mEA+1}], s[{mE}:{mE+1}], s[{mA}:{mA+1}]
        v_lshlrev_b32 v{vL16}, 4, v{vL}
        v_lshl_add_u32 v{vU0}, v{vT0}, 10, v{vT1}
        v_add_u32 v{vPD}, s{sA}, v{vU0}
        v_add_u32 v{vPD+1}, {8192-1024}, v{vPD}
        v_and_b32 v{vU0}, 31, v{vL}
        v_lshrrev_b32 v{vU1}, 5, v{vL}
        v_bfe_u32 v{vU2}, v{vL}, 1, 3
        v_xor_b32 v{vU2}, v{vU1}, v{vU2}
        v_lshlrev_b32 v{vU2}, 4, v{vU2}
        v_lshl_add_u32 v{vU2}, v{vU0}, 7, v{vU2}
        """)
        for ks in range(4):
            c += ops(f"""
            v_xor_b32 v{vU3}, {32*ks}, v{vU2}
            v_add_u32 v{vXA+ks}, s{sLB}, v{vU3}
            v_add_u32 v{vXA+4+ks}, {2*SLOT}, v{vXA+ks}
            """)
        c += ops(f"""
        v_bfe_u32 v{vU0}, v{vL}, 2, 2
        v_bfe_u32 v{vU2}, v{vL}, 4, 1
        v_lshlrev_b32 v{vU2}, 1, v{vU2}
        v_bfe_u32 v{vU3}, v{vL}, 1, 1
        v_or_b32 v{vU2}, v{vU2}, v{vU3}
        v_bfe_u32 v{vU3}, v{vL}, 3, 1
        v_lshl_or_b32 v{vU2}, v{vU3}, 2, v{vU2}
        v_and_b32 v{vU3}, 1, v{vL}
        v_lshlrev_b32 v{vU3}, 3, v{vU3}
        v_lshl_or_b32 v{vU2}, v{vU2}, 4, v{vU3}
        v_lshl_add_u32 v{vU2}, v{vU0}, 7, v{vU2}
        v_lshl_add_u32 v{vWA}, v{vU1}, 10, v{vU2}
        v_xor_b32 v{vWA+1}, 64, v{vWA}
        v_add_u32 v{vWA+2}, {2*SLOT}, v{vWA}
        v_add_u32 v{vWA+3}, {2*SLOT}, v{vWA+1}
        v_lshl_add_u32 v{vU3}, v{vU1}, 9, v{vU2}
        v_add_u32 v{vPA}, s{sLB}, v{vU3}
        v_xor_b32 v{vPA+1}, 64, v{vPA}
        v_add_u32 v{vPA+2}, {2*SLOT}, v{vPA}
        v_add_u32 v{vPA+3}, {2*SLOT}, v{vPA+1}
        v_add_u32 v{vPA+4}, {4*SLOT}, v{vPA}
        v_add_u32 v{vPA+5}, {4*SLOT}, v{vPA+1}
        s_lshl2_add_u32 s{sA}, s{sRB}, s{sW}
        s_lshl_b32 s{sB}, s{sA}, 8
        s_lshl2_add_u32 s{sB}, s{sJ}, s{sB}
        s_add_u32 s{sB}, s{sB}, {WS_F1 + (0 if role == 'H' else 64)}
        v_mov_b32 v{vFL}, s{sB}
        """)
        if role == "H":
            c += ops(f"""
            v_lshl_add_u32 v{vU3}, v{vU1}, 3, v{vU0}
            v_lshlrev_b32 v{vU3}, 6, v{vU3}
            v_bfe_u32 v{vU2}, v{vL}, 4, 1
            v_lshl_add_u32 v{vU3}, v{vU2}, 5, v{vU3}
            v_and_b32 v{vU2}, 3, v{vL}
            v_lshl_add_u32 v{vHA}, v{vU2}, 3, v{vU3}
            v_add_u32 v{vHA+1}, {2*SLOT}, v{vHA}
            s_mul_i32 s{sA}, s{sA}, {112*1024}
            v_add_u32 v{vST}, s{sA}, v{vL16}
            s_or_b32 s{sA}, s2, s{sW}
            s_cmp_lg_u32 s{sA}, 0
            s_cbranch_scc1 L_np
            s_or_b32 s{sA}, s4, 1
            v_mov_b32 v{vU0}, s{sA}
            v_mov_b32 v{vU1}, 0
            buffer_store_dword v{vU0}, v{vU1}, {r(DBG,4,'s')}, 0 offen sc1
            """) + [label("L_np")]
        else:
            c += ops(f"""
            s_lshl_b32 s{sB}, s{sA}, 15
            s_lshl_b32 s{sTM}, s{sJ}, 12
            s_add_u32 s{sB}, s{sB}, s{sTM}
            s_add_u32 s{sB}, s{sB}, {WS_PQ}
            v_add_u32 v{vST}, s{sB}, v{vL16}
            s_lshl_b32 s{sG}, s{sA}, 10
            s_lshr_b32 s{sTM}, s{sJ}, 2
            s_lshl_b32 s{sTM}, s{sTM}, 9
            s_add_u32 s{sG}, s{sG}, s{sTM}
            s_and_b32 s{sTM}, s{sJ}, 3
            s_lshl2_add_u32 s{sG}, s{sTM}, s{sG}
            s_add_u32 s{sG}, s{sG}, {WS_G}
            s_mov_b32 s{mSEL}, 0xffff
            s_mov_b32 s{mSEL+1}, 0xffff
            s_lshr_b32 s{sA}, s{sW}, 1
            s_lshl_b32 s{sA}, s{sA}, 15
            s_and_b32 s{sB}, s{sW}, 1
            s_lshl_b32 s{sB}, s{sB}, 11
            s_add_u32 s{sA}, s{sA}, s{sB}
            s_add_u32 s{sA}, s{sA}, {2*SLOT+4096}
            v_add_u32 v{vHA}, s{sA}, v{vL16}
            s_add_u32 s{sA}, s{sLB}, {2*SLOT+4096}
            v_add_u32 v{vHA+1}, s{sA}, v{vL16}
            s_lshl4_add_u32 s{sKP}, s{sJ}, s{sRB}
            s_lshl2_add_u32 s{sR3}, s{sKP}, s{sW}
            s_lshl_b32 s{sKP}, s{sR3}, 12
            s_add_u32 s{sKP}, s{sKP}, {WS_KVP}
            s_lshl_b32 s{sR3}, s{sR3}, 2
            s_add_u32 s{sR3}, s{sR3}, {WS_F3}
            s_and_b32 s{sTM}, s{sRB}, 3
            s_lshl2_add_u32 s{sTM}, s{sTM}, s{sW}
            s_lshl_b32 s{sTM}, s{sTM}, 6
            s_lshr_b32 s{sA}, s{sRB}, 2
            s_lshl_b32 s{sRK}, s{sJ}, 6
            s_add_u32 s{sRK}, s{sRK}, s{sA}
            s_lshl_b32 s{sRK}, s{sRK}, 12
            s_add_u32 s{sRK}, s{sRK}, s{sTM}
            s_add_u32 s{sRK}, s{sRK}, {WS_KVP}
            s_add_u32 s{sRP}, s{sRK}, {8 << 14}
            s_lshl2_add_u32 s{sRT}, s{sJ}, s{sA}
            s_lshl_b32 s{sRT}, s{sRT}, 10
            s_add_u32 s{sRT}, s{sRT}, s{sTM}
            s_add_u32 s{sRT}, s{sRT}, {WS_KVT}
            """)
            c += [op(f"v_mov_b32 v{vONE+i}, 0x3f803f80") for i in range(4)]
        return c

    def addr2(self):
        return ops(f"""
        v_add_u32 v{vHV}, s{sHV}, v{vL16}
        v_add_u32 v{vHV+1}, {112*1024}, v{vHV}
        v_add_u32 v{vPQ}, s{sPQ}, v{vL16}
        v_add_u32 v{vPQ+1}, 32768, v{vPQ}
        v_add_u32 v{vKV}, {WS_KVT}, v{vL16}
        v_lshrrev_b32 v{vU0}, 5, v{vL}
        v_and_b32 v{vF1}, 31, v{vL}
        v_lshlrev_b32 v{vF1}, 2, v{vF1}
        v_lshl_add_u32 v{vF1}, v{vU0}, 8, v{vF1}
        v_lshlrev_b32 v{vF3}, 3, v{vL}
        """)

    def addr3(self):
        a, b, d = 224, vU2, vU3
        return ops(f"""
        v_lshrrev_b32 v{a}, 5, v{vL}
        v_and_b32 v{b}, 7, v{vL}
        v_xor_b32 v{a}, v{a}, v{b}
        v_lshlrev_b32 v{a}, 4, v{a}
        v_and_b32 v{d}, 31, v{vL}
        v_lshl_add_u32 v{a}, v{d}, 8, v{a}
        v_add_u32 v{vRW}, s{sLB}, v{a}
        v_xor_b32 v{vRW+1}, 32, v{vRW}
        v_xor_b32 v{vRW+2}, 64, v{vRW}
        v_xor_b32 v{vRW+3}, 96, v{vRW}
        v_lshrrev_b32 v{d}, 3, v{vL}
        v_lshlrev_b32 v{a}, 1, v{b}
        v_xor_b32 v{a}, v{a}, v{d}
        v_lshlrev_b32 v{a}, 4, v{a}
        v_lshl_add_u32 v{a}, v{d}, 8, v{a}
        s_lshl_b32 s{sA}, s{sW}, 11
        v_add_u32 v{vRR}, s{sA}, v{a}
        v_xor_b32 v{vRR+1}, 16, v{vRR}
        v_lshlrev_b32 v{a}, 10, v{d}
        v_lshl_add_u32 v{vOUT}, v{b}, 4, v{a}
        s_lshl_b32 s{sA}, s{sW}, 5
        v_lshl_add_u32 v{vBP}, v{d}, 2, s{sA}
        """)

    def spin(self, load, check, ok, duty=None):
        lab, lp = self.lab("spin"), self.lab("spinl")
        self.tail += [label(lab)] + ([op("s_waitcnt vmcnt(0)"), op(duty)] if duty else [])
        self.tail += [op(f"s_mov_b32 s{sSP}, {SPIN}"), label(lp)] + ops(load) + [op("s_waitcnt vmcnt(0)")]
        self.tail += ops(check) + ops(f"""
        s_cbranch_scc0 {ok}
        s_sub_u32 s{sSP}, s{sSP}, 1
        s_cmp_lg_u32 s{sSP}, 0
        s_cbranch_scc1 {lp}
        s_branch {ok}
        """)
        return lab

    def nonce_jobs(self):
        def get(s):
            ok = self.lab("ok")
            chk = f"v_readfirstlane_b32 s{sN}, v{vN}\ns_cmp_eq_u32 s{sN}, 0"
            lab = self.spin(f"buffer_load_dword v{vN}, off, {r(DBG,4,'s')}, 0 sc1", chk, ok)
            return [wvm("nonce")] + ops(chk) + [op(f"s_cbranch_scc1 {lab}"), label(ok), op(f"v_mov_b32 v{vNV}, s{sN}")]
        return [Job(lambda s: [vm(f"buffer_load_dword v{vN}, off, {r(DBG,4,'s')}, 0 sc1", "nonce")], after("addr2", "valu")),
                Job(get, None, arrived("nonce"), "nonce")]

    def duty(self, s):
        for ev, fl in (("st13", "L"), ("stQ3", "A")):
            if ev in s.at and "flag" + fl not in s.at:
                return self.flag_store(vFL, "0", 32 if fl == "L" else 0)
        return None

    def poll(self, name, va, so, mask, soft, evs, hard=None, st=None):
        if mask:
            ld = f"buffer_load_dword v{vN}, v{va}, {r(WS,4,'s')}, s{so} offen sc1"
            chk = f"v_cmp_ne_u32 vcc, s{sN}, v{vN}\ns_nop 4\ns_and_b64 s[{sTM}:{sTM+1}], vcc, s[{mask}:{mask+1}]"
        else:
            ld = f"buffer_load_dwordx2 {r(vU0,2)}, v{va}, {r(WS,4,'s')}, s{so} offen sc1"
            chk = (f"v_cmp_ne_u32 vcc, s{sN}, v{vU0}\nv_cmp_ne_u32 s[{sTM}:{sTM+1}], s{sN}, v{vU0+1}\ns_nop 4\n"
                   f"s_or_b64 s[{sTM}:{sTM+1}], vcc, s[{sTM}:{sTM+1}]")

        def check(s):
            ok = self.lab("ok")
            lab = self.spin(ld, chk, ok, self.duty(s))
            for e in evs:
                s.mark(e)
            return [wvm("p" + name)] + ops(chk) + [op(f"s_cbranch_scc1 {lab}"), label(ok)] + (self.stamp(st, 2) if st else [])
        return [Job(lambda s: [vm(ld, "p" + name)], hard, soft), Job(check, None, arrived("p" + name))]

    @staticmethod
    def flag_store(va, so, imm):
        return f"buffer_store_dword v{vNV}, v{va}, {r(WS,4,'s')}, {so} offen{f' offset:{imm}' if imm else ''} sc1"

    def flag(self, name, tag, ev, va, so="0", imm=0, st=None, q="valu"):
        return Job(lambda s: [wvm(tag), vm(self.flag_store(va, so, imm), "f" + name)]
                   + (self.stamp(st, 2) if st else []), after(ev, q), lambda s: s.t >= s.dv[tag] + self.cfg.get("x" + name, 0), "flag" + name)

    def polls(self, j, role):
        cfg = self.cfg
        base = {"E": ("flagE", "dE"), "A": ("S1", "dA"), "L": ("flagL", "dL"), "K": ("S1", "dK")} if role == "H" else \
            {x: ("S1" if x == "E" else "E", "t" + x) for x in "EALK"}
        for nm, mask, st in (("E", mE, 2), ("A", mA, 6), ("L", mL, 4), ("LA", mLA, 4), ("EA", mEA, 2)):
            ev, d = base["A" if nm == "EA" else nm[0]]
            j["p" + nm], j["c" + nm] = self.poll(nm, vF1, sF1, mask, later(ev, cfg[d]), list(nm), after("addr2", "valu"), st)
        ev, d = base["K"]
        j["pK"], j["cK"] = self.poll("K", vF3, sF3, None, later(ev, cfg[d]), ["K"], after("S1"), 5)
        self.gates(j, cfg["c" + role])
        return [j[x] for x in cfg["ctl" + role].split()]

    @staticmethod
    def kbase(n):
        return (EQ + (n >> 2), n & 3) if n < 16 else (LQ + (n - 16) // 3, (n - 16) % 3)

    def pair_jobs(self, s, kind, n):
        name = f"{kind}{n}"
        base, i = self.kbase(n) if kind == "P" else (OQ + (n >> 1), n & 1)
        sr = W2 if kind == "P" else WO

        def issue(s):
            sl, q, prev = s.take(s.stage)
            s.held["_" + name] = (sl, q)
            s.m0q = "pair"
            s.lastp = s.t
            s.fly += 1
            return ([wlg(prev)] if prev else []) + ops(f"s_add_u32 m0, s{sLB}, {sl*SLOT+2048*q}\n"
                                                       + (f"s_mov_b32 s{sPT}, 0" if self.cfg["hack"] & 1 else f"s_lshl4_add_u32 s{sPT}, s{base}, {16384*i}")) + [self.dma(vPD, sr, sPT, name)]

        def issue2(s):
            s.held[name] = s.held.pop("_" + name)
            s.m0q = None
            return [self.dma(vPD + 1, sr, sPT, name, 1024)]

        def drain(s):
            sl, q = s.held.pop(name)
            s.fly -= 1
            s.stage.append(((sl, q, "d" + name), None))
            return [wvm(name)] + [ds(f"ds_read_b64_tr_b16 {r(8*n+4*nb+2*t,2,'a')}, v{vPA+2*(sl>>1)+nb} "
                                     f"offset:{SLOT*(sl&1)+2048*q+1024*t}", "d" + name) for t in range(2) for nb in range(2)]
        free = None if kind == "P" and n < 16 else (f"n{min(63, 34+2*(n-16))}" if kind == "P" else f"H{n+1}")

        def dhard(s):
            if name not in s.held:
                return "pair" if "pgo" in s.at else "chunk"
            return None if free is None or free in s.at else "stuck"
        s.q["pair"].append(Job(issue, lambda s: ("chunk" if "pgo" not in s.at else None if s.avail(s.stage) else "drain"),
                               lambda s: s.t >= s.lastp + (0 if "S1" in s.at else self.cfg["pg"]) and s.fly < self.cfg["pmax"]))
        s.q["pair"].append(Job(issue2, ev="i" + name))
        s.q["drain"].append(Job(drain, dhard, lambda s: s.t >= s.dv[name] + (0 if "S1" in s.at else self.cfg["latP"]), "d" + name))

    def silu8(self, a, t, pk=False):
        if pk:
            c = [op(f"v_pk_mul_f32 {r(t+i,2)}, {r(a+i,2)}, {r(sNL,2,'s')} op_sel_hi:[1,0]") for i in range(0, 8, 2)]
        else:
            c = [op(f"v_mul_f32 v{t+i}, s{sNL}, v{a+i}") for i in range(8)]
        c += [op(f"v_exp_f32 v{t+i}, v{t+i}") for i in range(8)]
        if pk:
            c += [op(f"v_pk_add_f32 {r(t+i,2)}, {r(t+i,2)}, 1.0 op_sel_hi:[1,0]") for i in range(0, 8, 2)]
        else:
            c += [op(f"v_add_f32 v{t+i}, 1.0, v{t+i}") for i in range(8)]
        c += [op(f"v_rcp_f32 v{t+i}, v{t+i}") for i in range(8)]
        if pk:
            c += [op(f"v_pk_mul_f32 {r(a+i,2)}, {r(a+i,2)}, {r(t+i,2)}") for i in range(0, 8, 2)]
        else:
            c += [op(f"v_mul_f32 v{a+i}, v{a+i}, v{t+i}") for i in range(8)]
        return c + cvt4(a)

    def phi8(self, a, t):
        c = [op(f"v_mul_f32 v{t+i}, s{sNL}, v{a+i}") for i in range(8)]
        c += [op(f"v_exp_f32_e64 v{t+i}, v{t+i} clamp") for i in range(8)]
        c += [op(f"v_max_f32 v{a+i}, {EPS:#x}, v{a+i}") for i in range(8)]
        c += [op(f"v_add_f32 v{a+i}, v{a+i}, v{t+i}") for i in range(8)]
        return c + cvt4(a)

    def valu_H(self):
        q = []
        for u in range(14):
            b, hf = divmod(u, 2)
            a = 16 * b + 8 * hf
            so, imm = [(sH0, u), (sH1, u - 4), (sHL, u - 8), (sHH, u - 12)][u >> 2]
            ev = f"m31.{b}" if b < 4 else f"m63.{b-4}"
            st = vm(f"buffer_store_dwordx4 {r(a)}, v{vST}, {r(WS,4,'s')}, s{so} offen offset:{1024*imm} sc1", "hE" if u < 8 else "hL")
            q += single(self.silu8(a, TMP + 8 * (u & 1), self.cfg["pk"] & (1 if u < 8 else 2)) + [st], f"st{u}", later(ev, 56), after(ev))
        return q

    def gate_mfma(self):
        rm, c, join = self.cfg["rm"], [], self.lab("gj")
        leaves = list(range(0, 8, rm + 1))
        for i in leaves:
            nxt = self.lab("gl")
            last = i == leaves[-1]
            if not last:
                c += ops(f"s_cmp_lg_u32 s{sGI}, {i}\ns_cbranch_scc1 {nxt}")
            c += [op(f"{MF} {r(96,16)}, {r(GF+4*ks)}, {r(XA+16*i+4*ks,4,'a')}, {r(96,16) if ks else 0}") for ks in range(4)]
            if not last:
                c += [op(f"s_branch {join}"), label(nxt)]
        return c + [label(join)]

    def valu_A(self):
        q = single([op(f"v_and_b32 v{vU0}, 0x1f0, v{vL16}"),
                    vm(f"buffer_store_dword v96, v{vU0}, {r(WS,4,'s')}, s{sG} offen sc1", "g")], "stG", later("gate", 56), after("gate"))
        for b in range(2):
            for hf in range(2):
                q += single(self.phi8(16 * b + 8 * hf, 120 + 16 * hf) + cvt4(32 + 16 * b + 8 * hf))
            m = []
            for hf in range(2):
                pk, vv = r(16 * b + 8 * hf), r(32 + 16 * b + 8 * hf)
                m.append(op(f"{MF} {r(D1[b],16)}, {pk}, {vv}, {r(D1[b],16) if hf else 0}"))
                m.append(op(f"{MF} {r(D2[b],16)}, {pk}, {r(vONE)}, {r(D2[b],16) if hf else 0}"))
            q += single(m, f"kv{b}")
        for b in range(2):
            c = []
            for i in range(16):
                f, t = (D2[b] + i, D1[b] + i) if i < 8 else (D1[b] + i, D2[b] + i)
                c.append(op(f"v_cndmask_b32 v{D1[b]+i}, v{f}, v{t}, s[{mSEL}:{mSEL+1}]"))
            c += [ds(f"ds_write_b128 v{vHA}, {r(D1[b]+4*x)} offset:{(2*b+(x>>1))*WREG + 1024*(x&1)}", "kw") for x in range(4)]
            q += single(c, f"sel{b}", later(f"kv{b}", 56))
        q.append(Job(lambda s: [wlg("kw"), op("s_barrier")], None, lambda s: s.t >= s.dl["kw"], "xbar"))
        q += single([ds(f"ds_read_b128 {r(160+4*x)}, v{vHA+1} offset:{(x>>2)*SLOT + 1024*(x&3)}", f"kr{x}") for x in range(8)])
        q.append(Job(lambda s: [wlg("kr7")], None, lambda s: s.t >= s.dl["kr7"], "xrd"))
        c = [op(f"v_add_f32 v{160+i}, v{160+i}, v{168+i}") for i in range(8)]
        c += [op(f"v_add_f32 v{176+i}, v{176+i}, v{184+i}") for i in range(8)]
        q += single(c)
        c = [op(f"v_mov_b32 v{TMP+2*i+1}, v{vNV}") for i in range(8)]
        c += [op(f"v_add_f32 v{TMP+2*i}, v{160+i}, v{176+i}") for i in range(8)]
        c += [vm(f"buffer_store_dwordx4 {r(TMP+4*x)}, v{vL16}, {r(WS,4,'s')}, s{sKP} offen offset:{1024*x} sc1", "kvp") for x in range(4)]
        q += single(c, "stK", None, after("nonce", "ctl"))
        for u in range(4):
            ev = f"m63.{u>>1}"
            st = vm(f"buffer_store_dwordx4 {r(64+8*u)}, v{vST}, {r(WS,4,'s')}, 0 offen offset:{1024*u} sc1", "pq")
            q += single(self.phi8(64 + 8 * u, TMP + 8 * (u & 1)) + [st], f"stQ{u}", later(ev, 56), after(ev))
        return q

    def reducer_addr(self):
        return ops(f"""
        v_lshrrev_b32 v{vRK}, 3, v{vL}
        v_lshlrev_b32 v{vRK}, 14, v{vRK}
        v_bfe_u32 v{vR3}, v{vL}, 2, 1
        v_lshl_add_u32 v{vRK}, v{vR3}, 11, v{vRK}
        v_and_b32 v{vRT}, 48, v{vL16}
        v_add_u32 v{vRK}, v{vRK}, v{vRT}
        v_lshl_add_u32 v{vRT}, v{vR3}, 3, v{vRT}
        v_and_b32 v{vR3}, 7, v{vL}
        v_lshlrev_b32 v{vR3}, 11, v{vR3}
        """)

    def reducer_jobs(self):
        ld = [f"buffer_load_dwordx4 {r(160+8*i+4*p)}, v{vRK}, {r(WS,4,'s')}, s{(sRK, sRP)[i]} offen offset:{1024*p} sc1"
              for i in range(2) for p in range(2)]
        chk = ""
        for fn, d in (("min", 176), ("max", 177)):
            chk += f"v_{fn}3_u32 v{d}, v161, v163, v165\nv_{fn}3_u32 v{d}, v{d}, v167, v169\n"
            chk += f"v_{fn}3_u32 v{d}, v{d}, v171, v173\nv_{fn}_u32 v{d}, v{d}, v175\n"
        chk += (f"v_cmp_ne_u32 vcc, s{sN}, v176\nv_cmp_ne_u32 s[{sTM}:{sTM+1}], s{sN}, v177\ns_nop 4\n"
                f"s_or_b64 s[{sTM}:{sTM+1}], vcc, s[{sTM}:{sTM+1}]")

        def total(s):
            ok = self.lab("ok")
            lab = self.spin("\n".join(ld), chk, ok, self.duty(s))
            c = [wvm("kp")] + ops(chk) + [op(f"s_cbranch_scc1 {lab}"), label(ok)] + self.stamp(1, 2)
            val = [160, 162, 164, 166]
            c += [op(f"v_add_f32 v{x}, v{x}, v{x+8}") for x in val]
            c += [op(f"v_add_f32_dpp v{x}, v{x}, v{x} row_ror:8 row_mask:0xf bank_mask:0xf") for x in val]
            for w in (16, 32):
                c += [op(f"v_mov_b32 v{x+1}, v{x}") for x in val]
                c += [op(f"v_permlane{w}_swap_b32 v{x}, v{x+1}") for x in val]
                c += [op(f"v_add_f32 v{x}, v{x}, v{x+1}") for x in val]
            return c + ops("v_cvt_pk_bf16_f32 v160, v160, v162\nv_cvt_pk_bf16_f32 v161, v164, v166") + \
                [vm(f"buffer_store_dwordx2 v[160:161], v{vRT}, {r(WS,4,'s')}, s{sRT} offen sc1", "kvt")]
        return [Job(lambda s: [vm(x, "kp") for x in ld], after("stK", "valu"), later("stK", self.cfg["dF"])),
                Job(total, None, arrived("kp"), "kvt")]

    def nblk(self, role, n):
        return 4 if n < 32 else (3 if role == "H" else 2)

    def steps(self, role):
        nb = self.nblk(role, 32)
        hyb = self.cfg["hyb"] >> (role == "A") & 1
        st = [[(n, b) for b in range(self.nblk(role, n))] for n in range(48 if hyb else 64)]
        if hyb:
            st += [[(48 + 4 * g + i, b) for i in range(4)] for b in range(nb) for g in range(4)]
        return st

    def reads(self, idx, step):
        buf, tag, out = WF[idx % 3], f"r{idx}", []
        for j, (n, b) in enumerate(step):
            if n < 32:
                i, ks = divmod(n, 4)
                s = i % 4
                if j == 0:
                    out.append(ds(f"ds_read_b128 {r(XA+4*n,4,'a')}, v{vXA+4*(s>>1)+ks} offset:{SLOT*(s&1)}", tag))
                o = 4096 + 2048 * (b >> 1)
            else:
                s, e, ks = (n - 32) >> 3, (n >> 2) & 1, n & 3
                o = 2048 * e
            base = SLOT * (s & 1) + WREG * ks
            for t in range(2):
                if n >= 32 and b == 2:
                    a, off = vHA + (s >> 1), base + 4096 + 1024 * e + 256 * t
                else:
                    a, off = vWA + 2 * (s >> 1) + (b & 1), base + o + 512 * t
                out.append(ds(f"ds_read_b64_tr_b16 {r(buf+4*j+2*t,2)}, v{a} offset:{off}", tag))
        return out

    def stage1(self, role):
        cfg = self.cfg
        s = Stream(cfg)
        s.emit(self.role_setup(role) + [op("s_waitcnt lgkmcnt(0)")])
        if cfg.get("stamps"):
            s.emit(ops(f"v_writelane_b32 v{vS0}, s4, 0\nv_writelane_b32 v{vS0+1}, s6, 0"))
        for i in range(cfg["pre"]):
            s.emit(self.chunk1(role, i))
        if role == "A":
            s.emit(self.gate_load())
        s.emit(self.late_setup(role))
        for n in range(28):
            self.pair_jobs(s, "P", n)
        for n in range(8):
            self.pair_jobs(s, "O", n)
        for g in str(cfg["g" + role]).split():
            idx, ev = g.split(":")
            j0 = s.q["pair"][2 * int(idx)]
            j0.hard = (lambda h, ev: lambda s: h(s) if ev in s.at else ("ctl" if ev[0].isupper() or ev.startswith("flag") else "valu"))(j0.hard, ev)
        if cfg["gp"]:
            s.emit(ops(f"""
            s_lshl2_add_u32 s3, s2, s{sW}
            v_lshlrev_b32 v67, {7 - cfg["gph"]}, v{vL}
            v_and_b32 v68, 0x7ff, v67
            v_and_b32 v69, 0x1ff, v67
            v_and_b32 v67, 0xfff, v67
            s_mul_i32 s99, s3, {14*128}
            s_lshl_b32 s{sA}, s3, 9
            s_lshl_b32 s{sB}, s3, 11
            s_and_b32 s3, s3, 511
            s_mul_i32 s3, s3, {(28 if role == 'H' else 24)*128}
            """))
            s.emit([vm(f"buffer_load_dword v65, v{a}, {r(d,4,'s')}, s{o} offen", "gp")
                    for k, a, d, o in ((1, 67, W, 3), (2, 68, X, sB), (0, 68, W2, 99), (0, 69, WO, sA)) if cfg["gp"] >> k & 1])
        pf = [int(x, 16) for x in str(cfg["pf"])]
        if pf:
            s.emit(ops(f"""
            v_and_b32 v64, 15, v{vL}
            v_lshlrev_b32 v64, 7, v64
            s_lshl2_add_u32 s3, s{sR}, s{sW}
            s_mul_i32 s99, s3, {112*128}
            s_lshl_b32 s3, s3, 12
            """))
        touch = [[vm(f"buffer_load_dword v65, v64, {r(W2,4,'s')}, s99 offen", "pf"), op("s_add_u32 s99, s99, 2048")]] * 7
        touch += [[vm(f"buffer_load_dword v65, v64, {r(WO,4,'s')}, s3 offen offset:{2048*k}", "pf")] for k in range(2)]
        if cfg["p3"]:
            s.emit(ops(f"""
            v_and_b32 v64, 15, v{vL}
            v_lshlrev_b32 v64, 10, v64
            v_and_b32 v66, 16, v{vL}
            v_lshl_add_u32 v64, v66, 2, v64
            v_and_b32 v66, 0xc40, v64
            s_lshl2_add_u32 s3, s{sR}, s{sW}
            s_mul_i32 s99, s3, {14*1024}
            s_lshl_b32 s3, s3, 12
            s_lshr_b32 s{sA}, s{W2}, 7
            s_sub_u32 s{sA}, {cfg["c3"]}, s{sA}
            s_and_b32 s{sA}, s{sA}, 7
            s_lshl_b32 s{sA}, s{sA}, 7
            s_add_u32 s99, s99, s{sA}
            s_lshr_b32 s{sA}, s{WO}, 7
            s_sub_u32 s{sA}, {cfg["c3"]}, s{sA}
            s_and_b32 s{sA}, s{sA}, 7
            s_lshl_b32 s{sA}, s{sA}, 7
            s_add_u32 s3, s3, s{sA}
            """))
            pf = [cfg["p3"] % 10, cfg["p3"] // 10 or cfg["p3"]]
            touch = [[vm(f"buffer_load_dword v65, v64, {r(W2,4,'s')}, s99 offen", "pf")],
                     [vm(f"buffer_load_dword v65, v66, {r(WO,4,'s')}, s3 offen", "pf")]]
        if cfg["pw"] and role == "A":
            if not cfg["p3"]:
                pf, touch = [], []
            s.emit(ops(f"""
            v_lshrrev_b32 v70, 2, v{vL}
            v_lshlrev_b32 v70, 10, v70
            v_and_b32 v71, 3, v{vL}
            v_lshl_add_u32 v70, v71, 6, v70
            s_and_b32 s{sA}, s{sR}, 15
            s_lshl2_add_u32 s{sA}, s{sA}, s{sW}
            s_mul_i32 s{sA}, s{sA}, 24576
            s_and_b32 s{sB}, s{sE}, 6
            s_lshl_b32 s{sB}, s{sB}, 7
            s_add_u32 s{sA}, s{sA}, s{sB}
            v_add_u32 v70, s{sA}, v70
            v_add_u32 v71, 8192, v70
            """))
            tw = [[vm(f"buffer_load_dword v65, v{70+k}, {r(W,4,'s')}, 0 offen", "pf")] for k in range(2)]
            if cfg["pw"] == 1:
                s.emit(tw)
            else:
                pf, touch = pf + [cfg["pw"]] * 2, touch + tw
        pm = str(cfg["pm" + role]).zfill(12)
        for i in range(cfg["pre"], 12):
            g = self.chunk1(role, i) if i < 8 else self.chunk2(role, i - 8)
            js = [Job(locked(x, None if k + 1 == len(g) or "m0" in g[k + 1][0].text else "chunk")) for k, x in enumerate(g)]
            if i >= 4:
                js[0].hard = after(f"b{i-4}")
            js[-1].ev = f"ic{i}"
            s.q["chunk"] += js
            for k, at in enumerate(pf):
                if at == i:
                    s.q["chunk"].append(Job((lambda t: lambda s: copy.deepcopy(t))(touch[k])))
            for _ in range(int(pm[i])):
                a, b = s.q["pair"].pop(0), s.q["pair"].pop(0)
                a.hard = lambda s: None if s.avail(s.stage) else "drain"
                s.q["chunk"] += [Job(relock(a.make), a.hard), b]
            if i + 1 == cfg["pstart"]:
                s.q["chunk"].append(Job(lambda s: [], ev="pgo"))
        s.stage = [((4, q, None), None) for q in range(4)]
        if role == "H":
            s.stage += [((x, 3, None), f"b{4+x}") for x in range(4)]
            s.stage += [((x, q, None), f"b{8+x}") for x in range(4) for q in range(3)]
            s.ring = [(x, None) for x in range(12, 16)] + [(x, "S1") for x in range(6, 12)] + [(x, f"st{8+x}") for x in range(6)]
        else:
            s.stage += [((x, q, None), f"b{4+x}") for x in range(2) for q in (2, 3)]
            s.stage += [((x, q, None), "xrd") for x in (2, 3) for q in (2, 3)]
            s.stage += [((x, q, None), f"b{8+x}") for x in range(4) for q in range(2)]
            s.ring = [(x, "S1") for x in range(4, 12)] + [(x, f"stQ{x}") for x in range(4)] + [(x, "kvt") for x in range(12, 16)]
        s.q["valu"] = single(self.addr2(), "addr2", None, after("ic7", "chunk"))
        s.q["valu"] += self.valu_H() if role == "H" else single(self.reducer_addr(), None, None, after("n30")) + self.valu_A()
        s.q["ctl"] = self.nonce_jobs()
        if role == "H":
            j = {"fE": self.flag("E", "hE", "st7", vFL, st=1), "fL": self.flag("L", "hL", "st13", vFL, imm=32, st=3)}
        else:
            j = {"fA": self.flag("A", "pq", "stQ3", vFL, st=3), "f3": self.flag("3", "kvt", "kvt", vR3, f"s{sR3}", st=8, q="ctl")}
            j["ld"], j["sum"] = self.reducer_jobs()
        s.q["ctl"] += self.polls(j, role)
        self.stage2_jobs(s)
        st = self.steps(role)
        last = len(st) - 1
        bars = {n: (n >> 2, [n >> 2]) for n in range(2, 32, 4)}
        bars.update({38: (8, [8]), 46: (9, [9])})
        bars.update({54: (10, [10]), 62: (11, [11])} if last == 63 else {48: (10, []), last - 1: (11, [10, 11])})
        s.emit([wvm("c0"), op("s_barrier")] + self.stamp(1) + self.stamp(1, 3) + self.reads(0, st[0]) + self.reads(1, st[1]))
        self.log.append(f"{role} start {s.t}")
        for idx, step in enumerate(st):
            nb = len(step)
            if idx == 32:
                s.emit(self.stamp(2))
                self.log.append(f"{role} phase2 {s.t}")
                if role == "A":
                    s.emit([wvm("gf")] + self.gate_mfma())
                    extra = 128 * (8 // (cfg["rm"] + 1) - 1)
                    s.t -= extra
                    s.mf -= extra
                    s.mark("gate")
            rd = self.reads(idx + 2, st[idx + 2]) if idx + 2 <= last else []
            bar, frees = bars.get(idx, (None, []))
            s.emit(wlg(f"r{idx}"))
            for j, (n, b) in enumerate(step):
                acc = 16 * b + (0 if n < 32 else 64)
                w_, x_ = r(WF[idx % 3] + 4 * j), r(XA + 4 * (n & 31), 4, "a")
                if role == "A" and n < 32:
                    w_, x_ = x_, w_
                s.emit(op(f"{MF} {r(acc,16)}, {w_}, {x_}, {r(acc,16) if n & 31 else 0}"))
                s.mark(f"m{n}.{b}")
                if j == 0 and bar is not None:
                    if bar < 11:
                        if bar + 1 >= cfg["pre"]:
                            s.require(f"ic{bar+1}", "chunk")
                        s.until(s.dv[f"c{bar+1}"])
                    s.emit([wlg(f"r{idx+1}")] + ([wvm(f"c{bar+1}")] if bar < 11 else []) + [op("s_barrier")] + self.stamp(bar + 2, 3))
                    for x in frees:
                        s.mark(f"b{x}")
                    self.log.append(f"b{bar} {s.t}")
                s.emit(rd[(j * len(rd) + nb - 1) // nb:((j + 1) * len(rd) + nb - 1) // nb])
                s.gap(0 if n < 32 else cfg["rate" if role == "H" else "rateA"])
                if b + 1 == self.nblk(role, n):
                    s.mark(f"n{n}")
            if idx == cfg["pstart"] > 12:
                s.mark("pgo")
        s.mark("S1")
        s.emit(self.stamp(3) + self.stamp(7, 2))
        self.log.append(f"{role} S1 {s.t} pf {s.pf}")
        return s

    def order(self):
        k = self.cfg["nplain"]
        if self.cfg["att"]:
            o = [("H", n, 0) for n in range(k - 1)] + [("o", 0, 0), ("o", 0, 1), ("H", k - 1, 0)]
            for n in range(8):
                for ii in range(2):
                    o += [("w", n, ii)] + ([("o", n + 1, ii)] if n < 7 else [])
            return o + [("H", n, 0) for n in range(k, 28)]
        o = [("H", n, 0) for n in range(k)]
        h = k
        for n in range(8):
            o += [("o", n, 0), ("o", n, 1)]
            if h < 28:
                o.append(("H", h, 0))
                h += 1
            o += [("w", n, 0), ("w", n, 1)]
        return o + [("H", n, 0) for n in range(h, 28)]

    def stage2_jobs(self, s):
        def slot(ev):
            return lambda s: ("pair" if ev != "E" and self.cfg["pfirst"] and s.q["pair"] and s.avail(s.stage) else
                              "ctl" if ev not in s.at else None if s.avail(s.ring) else "valu")

        hk = self.cfg["hack"] & 2

        def two(name, va, so, imm, ev):
            def mk(i):
                def f(s):
                    if i == 0:
                        s.held[name] = RING + 8 * s.take(s.ring)
                    return [vm(f"buffer_load_dwordx4 {r(s.held[name]+4*i)}, v{vL16 if hk else va+i}, {r(WS,4,'s')}, {0 if hk else 's%d' % so} offen offset:{imm} sc1", name)]
                return f
            return [Job(mk(0), slot(ev)), Job(mk(1), ev="i" + name)]

        def gload(s):
            x = s.held["G"] = RING + 8 * s.take(s.ring)
            c = [wvm("G")]
            for ii in range(2):
                b = x + 4 * ii
                c += ops(f"""
                v_add_f32 v{b}, v{b}, v{b+1}
                v_add_f32 v{b+2}, v{b+2}, v{b+3}
                v_add_f32 v{b}, v{b}, v{b+2}
                v_mov_b32 v{b+1}, v{b}
                v_permlane32_swap_b32 v{b}, v{b+1}
                v_add_f32 v{b}, v{b}, v{b+1}
                v_min_f32 v{b}, 0x41f00000, v{b}
                v_mul_f32 v{b}, {LOG2E:#x}, v{b}
                v_exp_f32 v{vES+ii}, v{b}
                v_add_f32 v{b}, 1.0, v{vES+ii}
                v_rcp_f32 v{vOM+ii}, v{b}
                """)
            s.q["valu"] += single(c, "gdone", arrived("G"))
            s.ring.append(((x - RING) // 8, "gdone"))
            return [vm(f"buffer_load_dwordx4 {r(x+4*i)}, v{vL16}, {r(WS,4,'s')}, s{sGA} offen offset:{1024*i} sc1", "G") for i in range(2)]
        first = True
        for kind, n, ii in self.order():
            if kind == "H":
                so, i = self.kbase(n)
                s.q["hq"] += two(f"h{n}", vHV, so, 1024 * i, "E" if n < 16 else "L")
            elif kind == "o" and ii == 0:
                so, i = OQ + (n >> 1), n & 1
                if first:
                    s.q["hq"].append(Job(gload, slot("A"), None, "iG"))
                    first = False
                s.q["hq"] += two(f"q{n}", vPQ, so, 1024 * i, "A")
                kv = vm(f"buffer_load_dwordx4 {r(KVA+4*n,4,'a')}, v{vKV}, {r(WS,4,'s')}, s{so} offen offset:{1024*i} sc1", f"k{n}")
                s.q["hq"].append(Job((lambda kv: lambda s: [kv])(kv), lambda s: "ctl" if "K" not in s.at else None if "S1" in s.at else "stuck", None, f"ik{n}"))

    def proc(self, n, ii):
        base = OB + 16 * ii
        num, den = (base, base + 8) if n % 2 == 0 else (base + 8, base)
        t = vU0 + ii
        c = ops(f"v_add_f32 v{t}, {EPS:#x}, v{den}\nv_rcp_f32 v{t}, v{t}\nv_mul_f32 v{t}, v{t}, v{vES+ii}")
        c += [op(f"v_mul_f32 v{num+x}, v{num+x}, v{t}") for x in range(8)]
        return c + cvt4(num)

    def stage2(self, s, name):
        cfg = self.cfg
        s.Q = cfg["Q2"]
        s.mfc = cfg["mfc2"]
        rate = cfg["rate2"]
        a3 = False
        for kind, n, ii in self.order():
            if not a3 and not s.q["drain"]:
                s.q["valu"] += single([wlg("dO7")] + self.addr3(), "addr3")
                a3 = True
            if kind == "H":
                s.require(f"ih{n}", "hq")
                s.require(f"dP{n}", "drain")
                s.until(s.dv[f"h{n}"])
                if n in (0, 16):
                    s.emit(self.stamp(4 + n // 16))
                    self.log.append(f"{name} H{n} {s.t}")
                x0 = s.held.pop(f"h{n}")
                s.emit([wvm(f"h{n}"), wlg(f"dP{n}")])
                for x in range(4):
                    ii, nb = x >> 1, x & 1
                    acc = r(32 * ii + 16 * nb, 16)
                    s.emit(op(f"{MF} {acc}, {r(8*n+4*nb,4,'a')}, {r(x0+4*ii)}, {acc if n else 0}"))
                    if x == 3:
                        s.ring.append(((x0 - RING) // 8, None))
                        s.mark(f"H{n}")
                    s.gap(rate)
            elif kind == "o":
                s.require(f"ik{n}", "hq")
                s.require("gdone", "valu")
                if name == "H":
                    s.require("st13", "valu")
                else:
                    s.require("stQ3", "valu")
                s.until(s.dv[f"k{n}"])
                x0 = s.held.pop(f"q{n}") if ii else s.held[f"q{n}"]
                s.emit(wvm(f"k{n}"))
                s.emit(op(f"{MF} {r(OB+16*ii,16)}, {r(KVA+4*n,4,'a')}, {r(x0+4*ii)}, 0"))
                s.mark(f"o{n}.{ii}")
                at = next((i + 1 for i, jb in enumerate(s.q["valu"]) if jb.ev and jb.ev[0] == "p"), 0)
                s.q["valu"][at:at] = single(self.proc(n, ii), f"p{n}.{ii}", later(f"o{n}.{ii}", cfg.get("dO", 56)))
                if ii:
                    s.ring.append(((x0 - RING) // 8, None))
                s.gap(rate)
            else:
                s.require(f"dO{n}", "drain")
                s.emit(wlg(f"dO{n}"))
                s.require(f"p{n}.{ii}", "valu")
                if n == 0 and ii == 0:
                    self.log.append(f"{name} w0 {s.t}")
                for nb in range(2):
                    acc = r(32 * ii + 16 * nb, 16)
                    s.emit(op(f"{MF} {acc}, {r(8*n+4*nb,4,'a')}, {r(OB+16*ii+8*(n&1))}, {acc}"))
                    s.gap(rate)
        if not a3:
            s.q["valu"] += single([wlg("dO7")] + self.addr3(), "addr3")
        s.require("addr3", "valu")
        for k, q in s.q.items():
            assert not q, (name, k, len(q))
        s.emit(self.stamp(6))
        self.log.append(f"{name} last {s.t} pf {s.pf} ev " + " ".join(f"{e}={s.at[e]}" for e in ("st7", "stK", "flagE", "flagF", "st13", "stQ3", "E", "kvt", "flagL", "flagA", "flag3", "A", "L", "K", "iP15", "iP27", "iO7") if e in s.at))
        c = [ds(f"ds_bpermute_b32 v{vES+ii}, v{vBP}, v{vOM+ii}", "bp") for ii in range(2)]
        for ii in range(2):
            for nb in range(2):
                for j in range(4):
                    c.append(ds(f"ds_write_b128 v{vRW+j}, {r(32*ii+16*nb+4*j)} offset:{SLOT*ii+128*nb}", "rw"))
        c += [lg0(), op("s_barrier")]
        for ii in range(2):
            for p in range(4):
                for z in range(2):
                    c.append(ds(f"ds_read_b128 {r(32*ii+8*p+4*z)}, v{vRR+z} offset:{WREG*p+SLOT*ii}", f"rr{ii}.{p}"))
        for ii in range(2):
            b = 32 * ii
            c.append(wlg(f"rr{ii}.1"))
            c += [op(f"v_pk_add_f32 {r(b+x,2)}, {r(b+x,2)}, {r(b+8+x,2)}") for x in range(0, 8, 2)]
            c.append(wlg(f"rr{ii}.3"))
            c += [op(f"v_pk_add_f32 {r(b+16+x,2)}, {r(b+16+x,2)}, {r(b+24+x,2)}") for x in range(0, 8, 2)]
            c += [op(f"v_pk_add_f32 {r(b+x,2)}, {r(b+x,2)}, {r(b+16+x,2)}") for x in range(0, 8, 2)]
            c += [op(f"v_mul_f32 v{b+x}, v{b+x}, v{vES+ii}") for x in range(8)]
            c += cvt4(b)
            c.append(vm(f"buffer_store_dwordx4 {r(b)}, v{vOUT}, {r(OUT,4,'s')}, s{sOB if ii else sOA} offen", "o"))
        if cfg.get("stamps"):
            c += [vm0()] + self.stamp({1: 7, 2: 9, 3: 14, 4: 1}[cfg["stamps"]], 0) + ops(f"""
            s_cmp_lg_u32 s{sW}, {cfg.get('stamp_wave', 0)}
            s_cbranch_scc1 L_end
            s_lshl_b32 s{sA}, s2, 8
            s_add_u32 s{sA}, s{sA}, {WS_STAMP}
            v_lshlrev_b32 v0, 3, v{vL}
            s_mov_b64 exec, 0xffffffff
            buffer_store_dwordx2 {r(vS0,2)}, v0, {r(WS,4,'s')}, s{sA} offen
            """)
        s.emit(c + [op("s_endpgm")])
        return s.items

    @staticmethod
    def gates(j, spec):
        for g in spec.split():
            name, ev = g.split(":")
            j[name].hard = (lambda h, ev: lambda s: (h(s) if h else None) if ev in s.at else ("hq" if ev[0] == "i" else "valu"))(j[name].hard, ev)

    def build(self):
        c = self.head()
        c += self.stage2(self.stage1("H"), "H")
        c += [label("L_A"), reset()]
        c += self.stage2(self.stage1("A"), "A")
        c += self.tail + [label("L_end"), op("s_endpgm")]
        lines, added = pad(resolve(flat(c)))
        hdr = open(f"cdna_kernels/{NAME}.s.ref").read().split("; Override launch")[0]
        t = hdr + "; @launch grid=(256,1,1) block=(256,1,1) lds=163840\n"
        t += f'.amdgcn_target "amdgcn-amd-amdhsa--gfx950"\n.text\n.globl {K}\n.p2align 8\n.type {K},@function\n{K}:\n'
        t += text(lines)
        t += '.section .rodata,"a"\n.p2align 6\n' + descriptor(K, 512, 256, 102)
        return t, added, len(lines)


def main():
    cfg = {}
    for a in sys.argv[2:]:
        k, _, v = a.partition("=")
        cfg[k] = (int(v) if v.lstrip("-").isdigit() else v.replace(",", " ")) if v else 1
    g = Gen(cfg)
    s, added, n = g.build()
    open(sys.argv[1], "w").write(s)
    print(sys.argv[1], "lines", n, "nop states", added, "|", "; ".join(g.log))


if __name__ == "__main__":
    main()
```
